```python
import torch

def _softmax(x, axis=-1):
    return torch.softmax(x, dim=axis)

def _gelu(x):
    return torch.nn.functional.gelu(x, approximate='tanh')

def _silu(x):
    return torch.nn.functional.silu(x)

def _sigmoid(x):
    return torch.sigmoid(x)

def _layernorm(x, axis=-1, eps=1e-05):
    m = x.mean(dim=axis, keepdim=True)
    v = x.var(dim=axis, keepdim=True, unbiased=False)
    return (x - m) / torch.sqrt(v + eps)

def _scatter_add(tgt, idx, src, axis=0):
    return tgt.clone().index_add_(axis, idx, src)

def _segment_sum(src, seg, n):
    out = torch.zeros((n,) + src.shape[1:], dtype=src.dtype)
    return out.index_add_(0, seg, src)

def _pad(x, pw):
    flat = tuple((v for pair in reversed(pw) for v in pair))
    return torch.nn.functional.pad(x, flat)
kernel_name = 'standalone__tree_speculative_verify_tree_attention_over_candidate_token_tree__decode'

def setup_inputs():

    _w = lambda a: (lambda t: t.to(torch.bfloat16) if t.is_floating_point() else t)(torch.as_tensor(a))
    B, Hq, Hkv, T, C, D = (2, 32, 16, 1, 16384, 128)
    tree_mask = torch.zeros((B, T, T), dtype=float)
    for b in range(B):
        parent = torch.zeros(T, dtype=torch.int64)
        for i in range(1, T):
            parent[i] = int(torch.randint(0, i, (1,)).item())
        for i in range(T):
            j = i
            tree_mask[b, i, j] = 1.0
            while j > 0:
                j = parent[j]
                tree_mask[b, i, j] = 1.0
    return {'q': _w((lambda *s: torch.randn(*s, dtype=torch.bfloat16) * 0.8)(B, Hq, T, D)), 'k_cache': _w((lambda *s: torch.randn(*s, dtype=torch.bfloat16) * 0.8)(B, Hkv, C, D)), 'v_cache': _w((lambda *s: torch.randn(*s, dtype=torch.bfloat16) * 0.05)(B, Hkv, C, D)), 'k_tree': _w((lambda *s: torch.randn(*s, dtype=torch.bfloat16) * 0.8)(B, Hkv, T, D)), 'v_tree': _w((lambda *s: torch.randn(*s, dtype=torch.bfloat16) * 0.05)(B, Hkv, T, D)), 'tree_mask': _w(tree_mask)}

def reference(q, k_cache, v_cache, k_tree, v_tree, tree_mask):
    B, Hq, T, D = q.shape
    Hkv, C = (k_cache.shape[1], k_cache.shape[2])
    rep = Hq // Hkv
    kc = (lambda x, n, axis: torch.repeat_interleave(x, n, dim=axis))(k_cache, rep, axis=1)
    vc = (lambda x, n, axis: torch.repeat_interleave(x, n, dim=axis))(v_cache, rep, axis=1)
    kt = (lambda x, n, axis: torch.repeat_interleave(x, n, dim=axis))(k_tree, rep, axis=1)
    vt = (lambda x, n, axis: torch.repeat_interleave(x, n, dim=axis))(v_tree, rep, axis=1)
    k = torch.concatenate([kc, kt], axis=2)
    v = torch.concatenate([vc, vt], axis=2)
    scale = D ** (-0.5)
    scores = torch.einsum('bhqd,bhkd->bhqk', q, k) * scale
    ctx_mask = torch.ones((B, 1, T, C), dtype=scores.dtype)
    tm = tree_mask[:, None, :, :].clone()
    full_mask = torch.concatenate([ctx_mask, tm], axis=-1)
    scores = scores + (1.0 - full_mask) * -1000000000.0
    p = _softmax(scores, axis=-1)
    return torch.einsum('bhqk,bhkd->bhqd', p, v)
```

```python
import sys
NAME = "standalone__tree_speculative_verify_tree_attention_over_candidate_token_tree__decode"

def gen(NSPLIT=8, NW=16, NT=None, nt_flag=""):
    C = 16384
    KPW = C // NSPLIT // NW
    NT = KPW // 16
    NWG = 32 * NSPLIT
    MLBASE = NWG * 1024
    LDS_ML = NW * 1024
    LDS_BYTES = NW * 1024 + NW * 16
    o = []
    A = o.append
    hdr = open("cdna_kernels/%s.s.ref" % NAME).read().split("\n")
    for l in hdr:
        if l.startswith("; @launch") or l.startswith("; Override") or l.startswith("; grid="):
            continue
        if l.startswith(";"):
            A(l)
        else:
            break
    A("; @launch kernel=part_kernel grid=(%d,1,1) block=(%d,1,1) lds=%d" % (NWG, NW * 64, LDS_BYTES))
    A("; @launch kernel=comb_kernel grid=(64,1,1) block=(128,1,1) lds=0")
    A('.amdgcn_target "amdgcn-amd-amdhsa--gfx950"')
    A(".text")
    A(".globl part_kernel")
    A(".p2align 8")
    A(".type part_kernel,@function")
    A("part_kernel:")
    A("  s_cmp_ge_u32 s2, %d" % NWG)
    A("  s_cbranch_scc1 L_part_end")
    A("  s_load_dwordx4 s[4:7], s[0:1], 0")
    A("  s_load_dwordx2 s[8:9], s[0:1], 16")
    A("  s_load_dwordx2 s[10:11], s[0:1], 64")
    A("  v_lshrrev_b32 v1, 6, v0")
    A("  v_and_b32 v2, 63, v0")
    A("  s_nop 0")
    A("  v_readfirstlane_b32 s30, v1")
    import math
    lg = int(math.log2(NSPLIT))
    A("  s_lshr_b32 s28, s2, %d" % lg)
    A("  s_and_b32 s29, s2, %d" % (NSPLIT - 1))
    A("  s_mov_b32 s32, 0x3e0293ee")
    A("  v_and_b32 v3, 15, v2")
    A("  v_lshrrev_b32 v4, 4, v2")
    A("  v_lshlrev_b32 v5, 8, v3")
    A("  v_lshl_add_u32 v5, v4, 4, v5")
    A("  v_lshlrev_b32 v6, 4, v3")
    A("  v_lshl_add_u32 v6, v4, 10, v6")
    A("  v_and_b32 v7, 1, v2")
    A("  v_lshlrev_b32 v7, 8, v7")
    A("  v_lshl_add_u32 v7, v4, 4, v7")
    A("  s_waitcnt lgkmcnt(0)")
    for (d, p, n) in ((12, 4, 16384), (16, 6, 0x8000000), (20, 8, 0x8000000), (24, 10, 0x1000000)):
        A("  s_mov_b32 s%d, s%d" % (d, p))
        A("  s_and_b32 s%d, s%d, 0xffff" % (d + 1, p + 1))
        A("  s_mov_b32 s%d, 0x%x" % (d + 2, n))
        A("  s_mov_b32 s%d, 0x00020000" % (d + 3))
    A("  s_lshl_b32 s31, s28, 22")
    A("  s_mul_i32 s33, s29, %d" % (NW * KPW * 256))
    A("  s_add_u32 s31, s31, s33")
    A("  s_mul_i32 s33, s30, %d" % (KPW * 256))
    A("  s_add_u32 s31, s31, s33")
    A("  s_lshl_b32 s34, s28, 9")
    Q = 8
    KB = [24, 40]
    VB = [56, 72]
    D = 88
    ACC = 92
    ACO = 100
    M, L, AL, ALO, T0, T1 = 108, 109, 110, 111, 112, 113
    P = 114
    PO = 118
    U = 122
    for s in range(4):
        A("  buffer_load_dwordx4 v[%d:%d], v7, s[12:15], s34 offen offset:%d" % (Q + 4 * s, Q + 4 * s + 3, 64 * s))
    def loadK(t):
        b = KB[t % 2]
        A("  s_add_u32 s33, s31, %d" % (t * 4096))
        for s in range(4):
            A("  buffer_load_dwordx4 v[%d:%d], v5, s[16:19], s33 offen offset:%d %s" % (b + 4 * s, b + 4 * s + 3, 64 * s, nt_flag))
    def loadV(t):
        b = VB[t % 2]
        A("  s_add_u32 s33, s31, %d" % (t * 4096))
        for j in range(4):
            A("  buffer_load_dwordx4 v[%d:%d], v6, s[20:23], s33 offen offset:%d %s" % (b + 4 * j, b + 4 * j + 3, 256 * j, nt_flag))
    loadK(0); loadV(0)
    if NT > 1:
        loadK(1); loadV(1)
    for k in range(16):
        A("  v_mov_b32 v%d, 0" % (ACC + k))
    A("  v_mov_b32 v%d, 0xf149f2ca" % M)
    A("  v_mov_b32 v%d, 0" % L)
    outstanding = []
    outstanding += ["K0"] * 4 + ["V0"] * 4
    if NT > 1:
        outstanding += ["K1"] * 4 + ["V1"] * 4
    def wait_for(tag):
        last = max(i for i, x in enumerate(outstanding) if x == tag)
        n = len(outstanding) - 1 - last
        A("  s_waitcnt vmcnt(%d)" % n)
        del outstanding[: last + 1]
    for t in range(NT):
        kb = KB[t % 2]; vb = VB[t % 2]
        wait_for("K%d" % t)
        for s in range(4):
            A("  v_mfma_f32_16x16x32_bf16 v[%d:%d], v[%d:%d], v[%d:%d], %s" % (
                D, D + 3, kb + 4 * s, kb + 4 * s + 3, Q + 4 * s, Q + 4 * s + 3,
                "0" if s == 0 else "v[%d:%d]" % (D, D + 3)))
        if t + 2 < NT:
            loadK(t + 2); outstanding += ["K%d" % (t + 2)] * 4
            A("  s_nop 3")
        else:
            A("  s_nop 7")
        A("  s_nop 1")
        A("  v_max_f32 v%d, v%d, v%d" % (T0, D, D + 1))
        A("  v_max3_f32 v%d, v%d, v%d, v%d" % (T0, T0, D + 2, D + 3))
        A("  v_max_f32 v%d, v%d, v%d" % (T0, M, T0))
        A("  v_sub_f32 v%d, v%d, v%d" % (T1, M, T0))
        A("  v_mul_f32 v%d, s32, v%d" % (T1, T1))
        A("  v_exp_f32 v%d, v%d" % (AL, T1))
        A("  v_mov_b32 v%d, v%d" % (M, T0))
        A("  v_mul_f32 v%d, s32, v%d" % (T1, T0))
        for i in range(4):
            A("  v_fma_f32 v%d, v%d, s32, -v%d" % (P + i, D + i, T1))
        for i in range(4):
            A("  v_exp_f32 v%d, v%d" % (P + i, P + i))
        A("  v_mov_b32_dpp v%d, v%d quad_perm:[1,0,3,2] row_mask:0xf bank_mask:0xf" % (ALO, AL))
        A("  v_mul_f32 v%d, v%d, v%d" % (L, L, AL))
        for i in range(4):
            A("  v_mov_b32_dpp v%d, v%d quad_perm:[1,0,3,2] row_mask:0xf bank_mask:0xf" % (PO + i, P + i))
        A("  v_add_f32 v%d, v%d, v%d" % (T0, P, P + 1))
        A("  v_add_f32 v%d, v%d, v%d" % (T1, P + 2, P + 3))
        A("  v_add_f32 v%d, v%d, v%d" % (T0, T0, T1))
        A("  v_add_f32 v%d, v%d, v%d" % (L, L, T0))
        for k in range(8):
            A("  v_mul_f32 v%d, v%d, v%d" % (ACC + k, ACC + k, AL))
        for k in range(8):
            A("  v_mul_f32 v%d, v%d, v%d" % (ACO + k, ACO + k, ALO))
        wait_for("V%d" % t)
        for j in range(4):
            for k in range(4):
                r = vb + 4 * j + k
                u = U + 2 * (k % 2)
                A("  v_lshlrev_b32 v%d, 16, v%d" % (u, r))
                A("  v_and_b32 v%d, 0xffff0000, v%d" % (u + 1, r))
                A("  v_fmac_f32 v%d, v%d, v%d" % (ACC + 2 * k, P + j, u))
                A("  v_fmac_f32 v%d, v%d, v%d" % (ACC + 2 * k + 1, P + j, u + 1))
                A("  v_fmac_f32 v%d, v%d, v%d" % (ACO + 2 * k, PO + j, u))
                A("  v_fmac_f32 v%d, v%d, v%d" % (ACO + 2 * k + 1, PO + j, u + 1))
        if t + 2 < NT:
            loadV(t + 2); outstanding += ["V%d" % (t + 2)] * 4
    A("  v_xor_b32 v%d, 16, v2" % U)
    A("  v_lshlrev_b32 v%d, 2, v%d" % (U, U))
    A("  v_xor_b32 v%d, 32, v2" % (U + 1))
    A("  v_lshlrev_b32 v%d, 2, v%d" % (U + 1, U + 1))
    A("  ds_bpermute_b32 v%d, v%d, v%d" % (T0, U, M))
    A("  s_waitcnt lgkmcnt(0)")
    A("  v_max_f32 v%d, v%d, v%d" % (T0, T0, M))
    A("  ds_bpermute_b32 v%d, v%d, v%d" % (T1, U + 1, T0))
    A("  s_waitcnt lgkmcnt(0)")
    A("  v_max_f32 v%d, v%d, v%d" % (T0, T0, T1))
    A("  v_sub_f32 v%d, v%d, v%d" % (T1, M, T0))
    A("  v_mul_f32 v%d, s32, v%d" % (T1, T1))
    A("  v_exp_f32 v%d, v%d" % (AL, T1))
    A("  v_mul_f32 v%d, s32, v%d" % (M, T0))
    A("  s_nop 1")
    A("  v_mov_b32_dpp v%d, v%d quad_perm:[1,0,3,2] row_mask:0xf bank_mask:0xf" % (ALO, AL))
    A("  v_mul_f32 v%d, v%d, v%d" % (L, L, AL))
    for k in range(8):
        A("  v_mul_f32 v%d, v%d, v%d" % (ACC + k, ACC + k, AL))
    for k in range(8):
        A("  v_mul_f32 v%d, v%d, v%d" % (ACO + k, ACO + k, ALO))
    for a in (U, U + 1):
        vals = [L] + [ACC + k for k in range(16)]
        for n, r in enumerate(vals):
            A("  ds_bpermute_b32 v%d, v%d, v%d" % (24 + n, a, r))
        A("  s_waitcnt lgkmcnt(0)")
        for n, r in enumerate(vals):
            A("  v_add_f32 v%d, v%d, v%d" % (r, r, 24 + n))
    A("  v_cmp_gt_u32 vcc, 16, v2")
    A("  s_and_saveexec_b64 s[36:37], vcc")
    A("  s_lshl_b32 s33, s30, 10")
    A("  v_and_b32 v%d, 1, v2" % T0)
    A("  v_lshlrev_b32 v%d, 9, v%d" % (T0, T0))
    A("  v_lshl_add_u32 v%d, v3, 5, v%d" % (T0, T0))
    A("  v_add_u32 v%d, s33, v%d" % (T0, T0))
    A("  v_xor_b32 v%d, 512, v%d" % (T1, T0))
    A("  ds_write_b128 v%d, v[%d:%d]" % (T0, ACC, ACC + 3))
    A("  ds_write_b128 v%d, v[%d:%d] offset:16" % (T0, ACC + 4, ACC + 7))
    A("  ds_write_b128 v%d, v[%d:%d]" % (T1, ACO, ACO + 3))
    A("  ds_write_b128 v%d, v[%d:%d] offset:16" % (T1, ACO + 4, ACO + 7))
    A("  s_lshl_b32 s33, s30, 4")
    A("  s_add_u32 s33, s33, %d" % LDS_ML)
    A("  v_lshlrev_b32 v%d, 3, v2" % T0)
    A("  v_add_u32 v%d, s33, v%d" % (T0, T0))
    A("  v_cmp_gt_u32 vcc, 2, v2")
    A("  s_and_b64 exec, exec, vcc")
    A("  v_mov_b32 v%d, v%d" % (M + 1, L))
    A("  ds_write_b64 v%d, v[%d:%d]" % (T0, M, M + 1))
    A("  s_mov_b64 exec, s[36:37]")
    A("  s_waitcnt lgkmcnt(0)")
    A("  s_barrier")
    A("  s_cmp_ge_u32 s30, 4")
    A("  s_cbranch_scc1 L_part_end")
    A("  v_lshrrev_b32 v8, 7, v0")
    A("  v_lshlrev_b32 v9, 3, v8")
    A("  v_add_u32 v9, %d, v9" % LDS_ML)
    for w in range(NW):
        A("  ds_read_b64 v[%d:%d], v9 offset:%d" % (24 + 2 * w, 25 + 2 * w, 16 * w))
    A("  v_lshlrev_b32 v10, 2, v0")
    for w in range(NW):
        A("  ds_read_b32 v%d, v10 offset:%d" % (64 + w, 1024 * w))
    A("  s_waitcnt lgkmcnt(0)")
    A("  v_mov_b32 v12, v24")
    for w in range(1, NW):
        A("  v_max_f32 v12, v12, v%d" % (24 + 2 * w))
    for w in range(NW):
        A("  v_sub_f32 v%d, v%d, v12" % (24 + 2 * w, 24 + 2 * w))
    for w in range(NW):
        A("  v_exp_f32 v%d, v%d" % (24 + 2 * w, 24 + 2 * w))
    A("  s_waitcnt lgkmcnt(0)")
    A("  v_mov_b32 v13, 0")
    A("  v_mov_b32 v15, 0")
    for w in range(NW):
        A("  v_fmac_f32 v13, v%d, v%d" % (24 + 2 * w, 25 + 2 * w))
        A("  v_fmac_f32 v15, v%d, v%d" % (24 + 2 * w, 64 + w))
    A("  s_lshl_b32 s33, s2, 10")
    A("  buffer_store_dword v15, v10, s[24:27], s33 offen")
    A("  v_and_b32 v14, 127, v0")
    A("  v_cmp_eq_u32 vcc, 0, v14")
    A("  s_and_saveexec_b64 s[36:37], vcc")
    A("  s_lshl_b32 s33, s2, 4")
    A("  s_add_u32 s33, s33, %d" % MLBASE)
    A("  buffer_store_dwordx2 v[12:13], v9, s[24:27], s33 offen offset:%d" % 0)
    A("L_part_end:")
    A("  s_endpgm")
    A(".globl comb_kernel")
    A(".p2align 8")
    A(".type comb_kernel,@function")
    A("comb_kernel:")
    A("  s_cmp_ge_u32 s2, 64")
    A("  s_cbranch_scc1 L_comb_end")
    A("  s_load_dwordx2 s[4:5], s[0:1], 0")
    A("  s_load_dwordx4 s[8:11], s[0:1], 24")
    A("  s_load_dwordx4 s[12:15], s[0:1], 40")
    A("  s_load_dwordx2 s[16:17], s[0:1], 64")
    A("  s_lshr_b32 s18, s2, 1")
    A("  s_and_b32 s19, s2, 1")
    A("  s_waitcnt lgkmcnt(0)")
    srd = {"q": (20, 4, 16384), "kt": (24, 8, 8192), "vt": (28, 10, 8192), "mk": (32, 12, 4), "out": (36, 14, 16384), "ws": (40, 16, 0x1000000)}
    for k, (d, p, n) in srd.items():
        A("  s_mov_b32 s%d, s%d" % (d, p))
        A("  s_and_b32 s%d, s%d, 0xffff" % (d + 1, p + 1))
        A("  s_mov_b32 s%d, 0x%x" % (d + 2, n))
        A("  s_mov_b32 s%d, 0x00020000" % (d + 3))
    A("  s_mul_i32 s44, s18, %d" % (NSPLIT * 16))
    A("  s_lshl_b32 s45, s19, 3")
    A("  s_add_u32 s44, s44, s45")
    A("  s_add_u32 s44, s44, %d" % MLBASE)
    A("  s_add_u32 s46, s16, s44")
    A("  s_addc_u32 s47, s17, 0")
    for s in range(NSPLIT):
        A("  s_load_dwordx2 s[%d:%d], s[46:47], %d" % (48 + 2 * s, 49 + 2 * s, 16 * s))
    A("  v_lshlrev_b32 v1, 2, v0")
    A("  s_mul_i32 s44, s18, %d" % (NSPLIT * 1024))
    A("  s_lshl_b32 s45, s19, 9")
    A("  s_add_u32 s44, s44, s45")
    for s in range(NSPLIT):
        A("  s_add_u32 s45, s44, %d" % (1024 * s))
        A("  buffer_load_dword v%d, v1, s[40:43], s45 offen" % (16 + s))
    A("  v_and_b32 v2, 63, v0")
    A("  v_lshlrev_b32 v3, 2, v2")
    A("  s_lshl_b32 s44, s2, 8")
    A("  buffer_load_dword v4, v3, s[20:23], s44 offen")
    A("  s_lshl_b32 s44, s18, 8")
    A("  buffer_load_dword v5, v3, s[24:27], s44 offen")
    A("  v_lshlrev_b32 v6, 1, v0")
    A("  buffer_load_ushort v7, v6, s[28:31], s44 offen")
    A("  s_lshr_b32 s44, s2, 5")
    A("  s_lshl_b32 s44, s44, 1")
    A("  v_mov_b32 v8, 0")
    A("  buffer_load_ushort v9, v8, s[32:35], s44 offen")
    A("  s_waitcnt vmcnt(2)")
    A("  v_lshlrev_b32 v10, 16, v4")
    A("  v_and_b32 v11, 0xffff0000, v4")
    A("  v_lshlrev_b32 v12, 16, v5")
    A("  v_and_b32 v13, 0xffff0000, v5")
    A("  v_mul_f32 v10, v10, v12")
    A("  v_fmac_f32 v10, v11, v13")
    for x in (1, 2, 4, 8, 16, 32):
        A("  v_xor_b32 v11, %d, v2" % x)
        A("  v_lshlrev_b32 v11, 2, v11")
        A("  ds_bpermute_b32 v12, v11, v10")
        A("  s_waitcnt lgkmcnt(0)")
        A("  v_add_f32 v10, v10, v12")
    A("  s_waitcnt vmcnt(0)")
    A("  s_mov_b32 s44, 0x3e0293ee")
    A("  v_lshlrev_b32 v9, 16, v9")
    A("  v_sub_f32 v9, 1.0, v9")
    A("  v_mul_f32 v9, 0xceabfb8f, v9")
    A("  v_fma_f32 v10, v10, s44, v9")
    A("  v_mov_b32 v11, v10")
    for s in range(NSPLIT):
        A("  v_max_f32 v11, s%d, v11" % (48 + 2 * s))
    A("  v_sub_f32 v12, v10, v11")
    A("  v_exp_f32 v12, v12")
    A("  v_lshlrev_b32 v7, 16, v7")
    A("  s_nop 0")
    A("  v_mul_f32 v13, v12, v7")
    for s in range(NSPLIT):
        A("  v_sub_f32 v14, s%d, v11" % (48 + 2 * s))
        A("  v_exp_f32 v14, v14")
        A("  s_nop 0")
        A("  v_fmac_f32 v13, v14, v%d" % (16 + s))
        A("  v_mul_f32 v14, s%d, v14" % (49 + 2 * s))
        A("  v_add_f32 v12, v12, v14")
    A("  v_rcp_f32 v12, v12")
    A("  s_nop 0")
    A("  v_mul_f32 v13, v13, v12")
    A("  v_cvt_pk_bf16_f32 v13, v13, v13")
    A("  s_lshl_b32 s44, s2, 8")
    A("  buffer_store_short v13, v6, s[36:39], s44 offen")
    A("L_comb_end:")
    A("  s_endpgm")
    A('.section .rodata,"a"')
    for (k, nv) in (("part_kernel", 128), ("comb_kernel", 32)):
        A(".p2align 6")
        A(".amdhsa_kernel %s" % k)
        A("  .amdhsa_next_free_vgpr %d" % nv)
        A("  .amdhsa_next_free_sgpr 96")
        A("  .amdhsa_accum_offset %d" % nv)
        A("  .amdhsa_group_segment_fixed_size 0")
        A("  .amdhsa_kernarg_size 72")
        A("  .amdhsa_user_sgpr_count 2")
        A("  .amdhsa_user_sgpr_kernarg_segment_ptr 1")
        A("  .amdhsa_system_sgpr_workgroup_id_x 1")
        A(".end_amdhsa_kernel")
    txt = "\n".join(o) + "\n"
    txt = txt.replace("  s_add_u32 s33, s33, %d\n  buffer_store_dwordx2" % MLBASE,
                      "  s_add_u32 s33, s33, %d\n  buffer_store_dwordx2" % (MLBASE - LDS_ML))
    return txt

if __name__ == "__main__":
    out = sys.argv[1]
    kw = {}
    for a in sys.argv[2:]:
        k, v = a.split("=")
        kw[k] = int(v) if v.isdigit() else v
    open(out, "w").write(gen(**kw))
```

```python
import sys, math
NAME = "standalone__tree_speculative_verify_tree_attention_over_candidate_token_tree__decode"

def gen(NSPLIT=8, NW=16, nt_flag="nt", ilv=1):
    C = 16384
    KPW = C // NSPLIT // NW
    NT = KPW // 16
    NWG = 32 * NSPLIT
    MLBASE = NWG * 1024
    LDS_ML = NW * 1024
    LDS_FLAG = LDS_ML + NW * 16
    LDS_BYTES = LDS_FLAG + 16
    o = []
    A = o.append
    hdr = open("cdna_kernels/%s.s.ref" % NAME).read().split("\n")
    for l in hdr:
        if l.startswith("; @launch"):
            continue
        if l.startswith(";"):
            A(l)
        else:
            break
    A("; @launch grid=(%d,1,1) block=(%d,1,1) lds=%d" % (NWG, NW * 64, LDS_BYTES))
    A('.amdgcn_target "amdgcn-amd-amdhsa--gfx950"')
    A(".text")
    K = NAME + "_kernel"
    A(".globl %s" % K)
    A(".p2align 8")
    A(".type %s,@function" % K)
    A("%s:" % K)
    A("  s_cmp_ge_u32 s2, %d" % NWG)
    A("  s_cbranch_scc1 L_end")
    A("  s_load_dwordx4 s[4:7], s[0:1], 0")
    A("  s_load_dwordx2 s[8:9], s[0:1], 16")
    A("  s_load_dwordx2 s[10:11], s[0:1], 64")
    A("  s_load_dwordx8 s[40:47], s[0:1], 24")
    A("  s_load_dwordx2 s[48:49], s[0:1], 56")
    A("  v_lshrrev_b32 v1, 6, v0")
    A("  v_and_b32 v2, 63, v0")
    A("  s_nop 0")
    A("  v_readfirstlane_b32 s30, v1")
    lg = int(math.log2(NSPLIT))
    A("  s_lshr_b32 s28, s2, %d" % lg)
    A("  s_and_b32 s29, s2, %d" % (NSPLIT - 1))
    A("  s_mov_b32 s32, 0x3e0293ee")
    A("  v_and_b32 v3, 15, v2")
    A("  v_lshrrev_b32 v4, 4, v2")
    A("  v_lshlrev_b32 v5, 8, v3")
    A("  v_lshl_add_u32 v5, v4, 4, v5")
    A("  v_lshlrev_b32 v6, 4, v3")
    A("  v_lshl_add_u32 v6, v4, 10, v6")
    A("  v_and_b32 v7, 1, v2")
    A("  v_lshlrev_b32 v7, 8, v7")
    A("  v_lshl_add_u32 v7, v4, 4, v7")
    A("  s_waitcnt lgkmcnt(0)")
    for (d, p, n) in ((12, 4, 16384), (16, 6, 0x8000000), (20, 8, 0x8000000), (24, 10, 0x1000000),
                      (52, 40, 8192), (56, 42, 8192), (60, 44, 4), (64, 46, 16384), (68, 48, 256)):
        A("  s_mov_b32 s%d, s%d" % (d, p))
        A("  s_and_b32 s%d, s%d, 0xffff" % (d + 1, p + 1))
        A("  s_mov_b32 s%d, 0x%x" % (d + 2, n))
        A("  s_mov_b32 s%d, 0x00020000" % (d + 3))
    A("  s_lshl_b32 s31, s28, 22")
    A("  s_mul_i32 s33, s29, %d" % (NW * KPW * 256))
    A("  s_add_u32 s31, s31, s33")
    A("  s_mul_i32 s33, s30, %d" % (4096 if ilv else KPW * 256))
    A("  s_add_u32 s31, s31, s33")
    A("  s_lshl_b32 s34, s28, 9")
    Q = 8
    KB = [24, 40]
    VB = [56, 72]
    D = 88
    ACC = 92
    ACO = 100
    M, L, AL, ALO, T0, T1 = 108, 109, 110, 111, 112, 113
    P = 114
    PO = 118
    U = 122
    for s in range(4):
        A("  buffer_load_dwordx4 v[%d:%d], v7, s[12:15], s34 offen offset:%d" % (Q + 4 * s, Q + 4 * s + 3, 64 * s))
    tstride = 4096 * (NW if ilv else 1)
    def loadK(t):
        b = KB[t % 2]
        A("  s_add_u32 s33, s31, %d" % (t * tstride))
        for s in range(4):
            A("  buffer_load_dwordx4 v[%d:%d], v5, s[16:19], s33 offen offset:%d %s" % (b + 4 * s, b + 4 * s + 3, 64 * s, nt_flag))
    def loadV(t):
        b = VB[t % 2]
        A("  s_add_u32 s33, s31, %d" % (t * tstride))
        for j in range(4):
            A("  buffer_load_dwordx4 v[%d:%d], v6, s[20:23], s33 offen offset:%d %s" % (b + 4 * j, b + 4 * j + 3, 256 * j, nt_flag))
    loadK(0); loadV(0)
    if NT > 1:
        loadK(1); loadV(1)
    for k in range(16):
        A("  v_mov_b32 v%d, 0" % (ACC + k))
    A("  v_mov_b32 v%d, 0xf149f2ca" % M)
    A("  v_mov_b32 v%d, 0" % L)
    outstanding = ["K0"] * 4 + ["V0"] * 4
    if NT > 1:
        outstanding += ["K1"] * 4 + ["V1"] * 4
    def wait_for(tag):
        last = max(i for i, x in enumerate(outstanding) if x == tag)
        n = len(outstanding) - 1 - last
        A("  s_waitcnt vmcnt(%d)" % n)
        del outstanding[: last + 1]
    for t in range(NT):
        kb = KB[t % 2]; vb = VB[t % 2]
        wait_for("K%d" % t)
        for s in range(4):
            A("  v_mfma_f32_16x16x32_bf16 v[%d:%d], v[%d:%d], v[%d:%d], %s" % (
                D, D + 3, kb + 4 * s, kb + 4 * s + 3, Q + 4 * s, Q + 4 * s + 3,
                "0" if s == 0 else "v[%d:%d]" % (D, D + 3)))
        if t + 2 < NT:
            loadK(t + 2); outstanding += ["K%d" % (t + 2)] * 4
            A("  s_nop 3")
        else:
            A("  s_nop 7")
        A("  s_nop 1")
        A("  v_max_f32 v%d, v%d, v%d" % (T0, D, D + 1))
        A("  v_max3_f32 v%d, v%d, v%d, v%d" % (T0, T0, D + 2, D + 3))
        A("  v_max_f32 v%d, v%d, v%d" % (T0, M, T0))
        A("  v_sub_f32 v%d, v%d, v%d" % (T1, M, T0))
        A("  v_mul_f32 v%d, s32, v%d" % (T1, T1))
        A("  v_exp_f32 v%d, v%d" % (AL, T1))
        A("  v_mov_b32 v%d, v%d" % (M, T0))
        A("  v_mul_f32 v%d, s32, v%d" % (T1, T0))
        for i in range(4):
            A("  v_fma_f32 v%d, v%d, s32, -v%d" % (P + i, D + i, T1))
        for i in range(4):
            A("  v_exp_f32 v%d, v%d" % (P + i, P + i))
        A("  v_mov_b32_dpp v%d, v%d quad_perm:[1,0,3,2] row_mask:0xf bank_mask:0xf" % (ALO, AL))
        A("  v_mul_f32 v%d, v%d, v%d" % (L, L, AL))
        for i in range(4):
            A("  v_mov_b32_dpp v%d, v%d quad_perm:[1,0,3,2] row_mask:0xf bank_mask:0xf" % (PO + i, P + i))
        A("  v_add_f32 v%d, v%d, v%d" % (T0, P, P + 1))
        A("  v_add_f32 v%d, v%d, v%d" % (T1, P + 2, P + 3))
        A("  v_add_f32 v%d, v%d, v%d" % (T0, T0, T1))
        A("  v_add_f32 v%d, v%d, v%d" % (L, L, T0))
        for k in range(8):
            A("  v_mul_f32 v%d, v%d, v%d" % (ACC + k, ACC + k, AL))
        for k in range(8):
            A("  v_mul_f32 v%d, v%d, v%d" % (ACO + k, ACO + k, ALO))
        wait_for("V%d" % t)
        for j in range(4):
            for k in range(4):
                r = vb + 4 * j + k
                u = U + 2 * (k % 2)
                A("  v_lshlrev_b32 v%d, 16, v%d" % (u, r))
                A("  v_and_b32 v%d, 0xffff0000, v%d" % (u + 1, r))
                A("  v_fmac_f32 v%d, v%d, v%d" % (ACC + 2 * k, P + j, u))
                A("  v_fmac_f32 v%d, v%d, v%d" % (ACC + 2 * k + 1, P + j, u + 1))
                A("  v_fmac_f32 v%d, v%d, v%d" % (ACO + 2 * k, PO + j, u))
                A("  v_fmac_f32 v%d, v%d, v%d" % (ACO + 2 * k + 1, PO + j, u + 1))
        if t + 2 < NT:
            loadV(t + 2); outstanding += ["V%d" % (t + 2)] * 4
    A("  v_xor_b32 v%d, 16, v2" % U)
    A("  v_lshlrev_b32 v%d, 2, v%d" % (U, U))
    A("  v_xor_b32 v%d, 32, v2" % (U + 1))
    A("  v_lshlrev_b32 v%d, 2, v%d" % (U + 1, U + 1))
    A("  ds_bpermute_b32 v%d, v%d, v%d" % (T0, U, M))
    A("  s_waitcnt lgkmcnt(0)")
    A("  v_max_f32 v%d, v%d, v%d" % (T0, T0, M))
    A("  ds_bpermute_b32 v%d, v%d, v%d" % (T1, U + 1, T0))
    A("  s_waitcnt lgkmcnt(0)")
    A("  v_max_f32 v%d, v%d, v%d" % (T0, T0, T1))
    A("  v_sub_f32 v%d, v%d, v%d" % (T1, M, T0))
    A("  v_mul_f32 v%d, s32, v%d" % (T1, T1))
    A("  v_exp_f32 v%d, v%d" % (AL, T1))
    A("  v_mul_f32 v%d, s32, v%d" % (M, T0))
    A("  s_nop 1")
    A("  v_mov_b32_dpp v%d, v%d quad_perm:[1,0,3,2] row_mask:0xf bank_mask:0xf" % (ALO, AL))
    A("  v_mul_f32 v%d, v%d, v%d" % (L, L, AL))
    for k in range(8):
        A("  v_mul_f32 v%d, v%d, v%d" % (ACC + k, ACC + k, AL))
    for k in range(8):
        A("  v_mul_f32 v%d, v%d, v%d" % (ACO + k, ACO + k, ALO))
    for a in (U, U + 1):
        vals = [L] + [ACC + k for k in range(16)]
        for n, r in enumerate(vals):
            A("  ds_bpermute_b32 v%d, v%d, v%d" % (24 + n, a, r))
        A("  s_waitcnt lgkmcnt(0)")
        for n, r in enumerate(vals):
            A("  v_add_f32 v%d, v%d, v%d" % (r, r, 24 + n))
    A("  v_cmp_gt_u32 vcc, 16, v2")
    A("  s_and_saveexec_b64 s[36:37], vcc")
    A("  s_lshl_b32 s33, s30, 10")
    A("  v_and_b32 v%d, 1, v2" % T0)
    A("  v_lshlrev_b32 v%d, 9, v%d" % (T0, T0))
    A("  v_lshl_add_u32 v%d, v3, 5, v%d" % (T0, T0))
    A("  v_add_u32 v%d, s33, v%d" % (T0, T0))
    A("  v_xor_b32 v%d, 512, v%d" % (T1, T0))
    A("  ds_write_b128 v%d, v[%d:%d]" % (T0, ACC, ACC + 3))
    A("  ds_write_b128 v%d, v[%d:%d] offset:16" % (T0, ACC + 4, ACC + 7))
    A("  ds_write_b128 v%d, v[%d:%d]" % (T1, ACO, ACO + 3))
    A("  ds_write_b128 v%d, v[%d:%d] offset:16" % (T1, ACO + 4, ACO + 7))
    A("  s_lshl_b32 s33, s30, 4")
    A("  s_add_u32 s33, s33, %d" % LDS_ML)
    A("  v_lshlrev_b32 v%d, 3, v2" % T0)
    A("  v_add_u32 v%d, s33, v%d" % (T0, T0))
    A("  v_cmp_gt_u32 vcc, 2, v2")
    A("  s_and_b64 exec, exec, vcc")
    A("  ds_write_b64 v%d, v[%d:%d]" % (T0, M, M + 1))
    A("  s_mov_b64 exec, s[36:37]")
    A("  s_waitcnt lgkmcnt(0)")
    A("  s_barrier")
    A("  s_cmp_ge_u32 s30, 4")
    A("  s_cbranch_scc1 L_end")
    A("  v_lshrrev_b32 v8, 7, v0")
    A("  v_lshlrev_b32 v16, 2, v2")
    A("  v_lshl_add_u32 v17, v8, 8, v16")
    A("  buffer_load_dword v18, v17, s[12:15], s34 offen")
    A("  s_lshl_b32 s35, s28, 8")
    A("  buffer_load_dword v19, v16, s[52:55], s35 offen")
    A("  v_and_b32 v14, 127, v0")
    A("  v_lshlrev_b32 v20, 1, v14")
    A("  buffer_load_ushort v21, v20, s[56:59], s35 offen")
    A("  s_lshr_b32 s35, s28, 4")
    A("  s_lshl_b32 s35, s35, 1")
    A("  v_mov_b32 v22, 0")
    A("  buffer_load_ushort v23, v22, s[60:63], s35 offen")
    A("  v_lshlrev_b32 v9, 3, v8")
    A("  v_add_u32 v9, %d, v9" % LDS_ML)
    for w in range(NW):
        A("  ds_read_b64 v[%d:%d], v9 offset:%d" % (24 + 2 * w, 25 + 2 * w, 16 * w))
    A("  v_lshlrev_b32 v10, 2, v0")
    for w in range(NW):
        A("  ds_read_b32 v%d, v10 offset:%d" % (64 + w, 1024 * w))
    A("  s_waitcnt lgkmcnt(0)")
    A("  v_mov_b32 v12, v24")
    for w in range(1, NW):
        A("  v_max_f32 v12, v12, v%d" % (24 + 2 * w))
    for w in range(NW):
        A("  v_sub_f32 v%d, v%d, v12" % (24 + 2 * w, 24 + 2 * w))
    for w in range(NW):
        A("  v_exp_f32 v%d, v%d" % (24 + 2 * w, 24 + 2 * w))
    A("  v_mov_b32 v13, 0")
    A("  v_mov_b32 v15, 0")
    for w in range(NW):
        A("  v_fmac_f32 v13, v%d, v%d" % (24 + 2 * w, 25 + 2 * w))
        A("  v_fmac_f32 v15, v%d, v%d" % (24 + 2 * w, 64 + w))
    A("  s_lshl_b32 s33, s2, 10")
    A("  buffer_store_dword v15, v10, s[24:27], s33 offen sc1")
    A("  v_cmp_eq_u32 vcc, 0, v14")
    A("  s_and_saveexec_b64 s[36:37], vcc")
    A("  s_lshl_b32 s33, s2, 4")
    A("  s_add_u32 s33, s33, %d" % (MLBASE - LDS_ML))
    A("  buffer_store_dwordx2 v[12:13], v9, s[24:27], s33 offen sc1")
    A("  s_mov_b64 exec, s[36:37]")
    A("  s_waitcnt vmcnt(4)")
    A("  v_lshlrev_b32 v24, 16, v18")
    A("  v_and_b32 v25, 0xffff0000, v18")
    A("  v_lshlrev_b32 v26, 16, v19")
    A("  v_and_b32 v27, 0xffff0000, v19")
    A("  v_mul_f32 v24, v24, v26")
    A("  v_fmac_f32 v24, v25, v27")
    for x in (1, 2, 4, 8, 16, 32):
        A("  v_xor_b32 v25, %d, v2" % x)
        A("  v_lshlrev_b32 v25, 2, v25")
        A("  ds_bpermute_b32 v26, v25, v24")
        A("  s_waitcnt lgkmcnt(0)")
        A("  v_add_f32 v24, v24, v26")
    A("  s_waitcnt vmcnt(0)")
    A("  s_barrier")
    A("  s_cmp_lg_u32 s30, 0")
    A("  s_cbranch_scc1 L_wait")
    A("  v_mov_b32 v26, 1")
    A("  v_mov_b32 v27, 0")
    A("  s_lshl_b32 s33, s28, 2")
    A("  v_cmp_eq_u32 vcc, 0, v2")
    A("  s_and_saveexec_b64 s[36:37], vcc")
    A("  buffer_atomic_add v26, v27, s[68:71], s33 offen sc0 sc1")
    A("  s_waitcnt vmcnt(0)")
    A("  v_mov_b32 v27, %d" % LDS_FLAG)
    A("  ds_write_b32 v27, v26")
    A("  s_waitcnt lgkmcnt(0)")
    A("  s_mov_b64 exec, s[36:37]")
    A("L_wait:")
    A("  s_barrier")
    A("  v_mov_b32 v27, %d" % LDS_FLAG)
    A("  ds_read_b32 v26, v27")
    A("  s_waitcnt lgkmcnt(0)")
    A("  v_readfirstlane_b32 s33, v26")
    A("  s_nop 3")
    A("  s_cmp_lg_u32 s33, %d" % (NSPLIT - 1))
    A("  s_cbranch_scc1 L_end")
    A("  s_mul_i32 s35, s28, %d" % (NSPLIT * 1024))
    for s in range(NSPLIT):
        A("  s_add_u32 s33, s35, %d" % (1024 * s))
        A("  buffer_load_dword v%d, v10, s[24:27], s33 offen sc1" % (64 + s))
    A("  s_mul_i32 s35, s28, %d" % (NSPLIT * 16))
    A("  s_add_u32 s35, s35, %d" % (MLBASE - LDS_ML))
    for s in range(NSPLIT):
        A("  s_add_u32 s33, s35, %d" % (16 * s))
        A("  buffer_load_dwordx2 v[%d:%d], v9, s[24:27], s33 offen sc1" % (32 + 2 * s, 33 + 2 * s))
    A("  v_lshlrev_b32 v23, 16, v23")
    A("  v_sub_f32 v23, 1.0, v23")
    A("  v_mul_f32 v23, 0xceabfb8f, v23")
    A("  v_fma_f32 v24, v24, s32, v23")
    A("  v_lshlrev_b32 v21, 16, v21")
    A("  s_waitcnt vmcnt(0)")
    A("  v_mov_b32 v12, v24")
    for s in range(NSPLIT):
        A("  v_max_f32 v12, v12, v%d" % (32 + 2 * s))
    A("  v_sub_f32 v13, v24, v12")
    A("  v_exp_f32 v13, v13")
    for s in range(NSPLIT):
        A("  v_sub_f32 v%d, v%d, v12" % (32 + 2 * s, 32 + 2 * s))
    for s in range(NSPLIT):
        A("  v_exp_f32 v%d, v%d" % (32 + 2 * s, 32 + 2 * s))
    A("  v_mul_f32 v15, v13, v21")
    for s in range(NSPLIT):
        A("  v_fmac_f32 v15, v%d, v%d" % (32 + 2 * s, 64 + s))
        A("  v_fmac_f32 v13, v%d, v%d" % (32 + 2 * s, 33 + 2 * s))
    A("  v_rcp_f32 v13, v13")
    A("  s_nop 0")
    A("  v_mul_f32 v15, v15, v13")
    A("  v_cvt_pk_bf16_f32 v15, v15, v15")
    A("  v_lshlrev_b32 v20, 1, v0")
    A("  buffer_store_short v15, v20, s[64:67], s34 offen")
    A("L_end:")
    A("  s_endpgm")
    A('.section .rodata,"a"')
    A(".p2align 6")
    A(".amdhsa_kernel %s" % K)
    A("  .amdhsa_next_free_vgpr 128")
    A("  .amdhsa_next_free_sgpr 80")
    A("  .amdhsa_accum_offset 128")
    A("  .amdhsa_group_segment_fixed_size 0")
    A("  .amdhsa_kernarg_size 72")
    A("  .amdhsa_user_sgpr_count 2")
    A("  .amdhsa_user_sgpr_kernarg_segment_ptr 1")
    A("  .amdhsa_system_sgpr_workgroup_id_x 1")
    A(".end_amdhsa_kernel")
    return "\n".join(o) + "\n"

if __name__ == "__main__":
    out = sys.argv[1]
    kw = {}
    for a in sys.argv[2:]:
        k, v = a.split("=")
        kw[k] = int(v) if v.isdigit() else v
    open(out, "w").write(gen(**kw))
```

```python
import sys, math
NAME = "standalone__tree_speculative_verify_tree_attention_over_candidate_token_tree__decode"

def gen(ldf="", NWG=256):
    NW = 8
    NCH = 2048
    NIT = NCH // NWG
    CPP = 64
    MLBASE = NCH * 1024
    LBUF = 32 * 1024 + 512
    LDS_FLAG = 2 * LBUF
    LDS_BYTES = LDS_FLAG + 64
    o = []
    A = o.append
    hdr = open("cdna_kernels/%s.s.ref" % NAME).read().split("\n")
    for l in hdr:
        if l.startswith("; @launch"):
            continue
        if l.startswith(";"):
            A(l)
        else:
            break
    A("; @launch grid=(%d,1,1) block=(%d,1,1) lds=%d" % (NWG, NW * 64, LDS_BYTES))
    A('.amdgcn_target "amdgcn-amd-amdhsa--gfx950"')
    A(".text")
    K = NAME + "_kernel"
    A(".globl %s" % K)
    A(".p2align 8")
    A(".type %s,@function" % K)
    A("%s:" % K)
    A("  s_cmp_ge_u32 s2, %d" % NWG)
    A("  s_cbranch_scc1 L_end")
    A("  s_load_dwordx4 s[4:7], s[0:1], 0")
    A("  s_load_dwordx2 s[8:9], s[0:1], 16")
    A("  s_load_dwordx2 s[10:11], s[0:1], 64")
    A("  s_load_dwordx8 s[40:47], s[0:1], 24")
    A("  s_load_dwordx2 s[48:49], s[0:1], 56")
    A("  v_lshrrev_b32 v1, 6, v0")
    A("  v_and_b32 v2, 63, v0")
    A("  s_nop 0")
    A("  v_readfirstlane_b32 s30, v1")
    A("  s_mov_b32 s32, 0x3e0293ee")
    A("  v_and_b32 v3, 15, v2")
    A("  v_lshrrev_b32 v4, 4, v2")
    A("  v_lshlrev_b32 v5, 8, v3")
    A("  v_lshl_add_u32 v5, v4, 4, v5")
    A("  v_lshlrev_b32 v6, 4, v3")
    A("  v_lshl_add_u32 v6, v4, 10, v6")
    A("  v_and_b32 v7, 1, v2")
    A("  v_lshlrev_b32 v7, 8, v7")
    A("  v_lshl_add_u32 v7, v4, 4, v7")
    A("  v_and_b32 v8, 1, v2")
    A("  v_lshlrev_b32 v8, 9, v8")
    A("  v_lshl_add_u32 v8, v3, 5, v8")
    A("  v_lshl_add_u32 v8, v4, 10, v8")
    A("  s_lshl_b32 s33, s30, 12")
    A("  v_add_u32 v8, s33, v8")
    A("  v_xor_b32 v9, 512, v8")
    A("  v_and_b32 v10, 1, v2")
    A("  v_lshl_add_u32 v10, v4, 1, v10")
    A("  v_lshlrev_b32 v10, 3, v10")
    A("  s_lshl_b32 s33, s30, 6")
    A("  s_add_u32 s33, s33, 32768")
    A("  v_add_u32 v10, s33, v10")
    A("  v_lshlrev_b32 v11, 2, v0")
    A("  v_lshrrev_b32 v12, 7, v0")
    A("  v_and_b32 v13, 31, v2")
    A("  v_lshl_add_u32 v13, v13, 1, v12")
    A("  v_lshlrev_b32 v13, 3, v13")
    A("  v_add_u32 v13, 32768, v13")
    A("  v_lshl_add_u32 v14, v2, 1, v12")
    A("  v_lshlrev_b32 v14, 3, v14")
    A("  v_lshlrev_b32 v15, 3, v12")
    for n, x in enumerate((1, 2, 4, 8, 16, 32)):
        A("  v_xor_b32 v%d, %d, v2" % (16 + n, x))
        A("  v_lshlrev_b32 v%d, 2, v%d" % (16 + n, 16 + n))
    A("  v_cmp_gt_u32 s[72:73], 2, v3")
    A("  v_and_b32 v22, 127, v0")
    A("  v_cmp_eq_u32 s[74:75], 0, v22")
    A("  v_cmp_eq_u32 s[76:77], 0, v2")
    A("  s_waitcnt lgkmcnt(0)")
    for (d, p, n) in ((12, 4, 16384), (16, 6, 0x8000000), (20, 8, 0x8000000), (24, 10, 0x1000000),
                      (52, 40, 8192), (56, 42, 8192), (60, 44, 4), (64, 46, 16384), (68, 48, 256)):
        A("  s_mov_b32 s%d, s%d" % (d, p))
        A("  s_and_b32 s%d, s%d, 0xffff" % (d + 1, p + 1))
        A("  s_mov_b32 s%d, 0x%x" % (d + 2, n))
        A("  s_mov_b32 s%d, 0x00020000" % (d + 3))
    A("  s_lshl_b32 s31, s2, 16")
    A("  s_lshl_b32 s33, s30, 13")
    A("  s_add_u32 s31, s31, s33")
    A("  s_lshr_b32 s28, s2, 6")
    Q = 24
    KB = 40
    VB = 72
    D = 104
    P = 112
    PO = 120
    ACC = 128
    ACO = 136
    M, L, T0, T1 = 144, 145, 146, 147
    U = 148
    RA = 152
    X = 154
    OB = 168
    out = []
    def wait_for(tag):
        idx = [i for i, x in enumerate(out) if x == tag]
        if not idx:
            return
        last = max(idx)
        n = len(out) - 1 - last
        A("  s_waitcnt vmcnt(%d)" % n)
        del out[: last + 1]
    def loadQ(i):
        A("  s_add_u32 s34, s28, %d" % (i * (NWG // CPP)))
        A("  s_lshl_b32 s34, s34, 9")
        for s in range(4):
            A("  buffer_load_dwordx4 v[%d:%d], v7, s[12:15], s34 offen offset:%d" % (Q + 4 * s, Q + 4 * s + 3, 64 * s))
        out.extend(["Q%d" % i] * 4)
    def loadK(i):
        for t in range(2):
            A("  s_add_u32 s33, s31, %d" % (i * NWG * 65536 + t * 4096))
            for s in range(4):
                b = KB + 16 * t + 4 * s
                A("  buffer_load_dwordx4 v[%d:%d], v5, s[16:19], s33 offen offset:%d %s" % (b, b + 3, 64 * s, ldf))
        out.extend(["K%d" % i] * 8)
    def loadV(i):
        for t in range(2):
            A("  s_add_u32 s33, s31, %d" % (i * NWG * 65536 + t * 4096))
            for j in range(4):
                b = VB + 16 * t + 4 * j
                A("  buffer_load_dwordx4 v[%d:%d], v6, s[20:23], s33 offen offset:%d %s" % (b, b + 3, 256 * j, ldf))
        out.extend(["V%d" % i] * 8)
    def wave_reduce(reg, op, tmp, nbits=6):
        for n in range(nbits):
            A("  ds_bpermute_b32 v%d, v%d, v%d" % (tmp, 16 + n, reg))
            A("  s_waitcnt lgkmcnt(0)")
            A("  %s v%d, v%d, v%d" % (op, reg, reg, tmp))
    def combine(pair_sreg, uid):
        A("  s_lshl_b32 s35, s%d, 16" % pair_sreg)
        for s in range(CPP):
            if s % 4 == 0:
                A("  s_add_u32 s33, s35, %d" % (1024 * s))
            A("  buffer_load_dword v%d, v11, s[24:27], s33 offen offset:%d sc1" % (OB + s, 1024 * (s % 4)))
        A("  s_lshl_b32 s35, s%d, 10" % pair_sreg)
        A("  s_add_u32 s35, s35, %d" % MLBASE)
        A("  buffer_load_dwordx2 v[%d:%d], v14, s[24:27], s35 offen sc1" % (X, X + 1))
        A("  s_lshl_b32 s35, s%d, 9" % pair_sreg)
        A("  v_lshlrev_b32 v%d, 2, v2" % (X + 2))
        A("  v_lshl_add_u32 v%d, v12, 8, v%d" % (X + 3, X + 2))
        A("  buffer_load_dword v%d, v%d, s[12:15], s35 offen" % (X + 4, X + 3))
        A("  s_lshl_b32 s35, s%d, 8" % pair_sreg)
        A("  buffer_load_dword v%d, v%d, s[52:55], s35 offen" % (X + 5, X + 2))
        A("  v_lshlrev_b32 v%d, 1, v22" % (X + 3))
        A("  buffer_load_ushort v%d, v%d, s[56:59], s35 offen" % (X + 6, X + 3))
        A("  s_lshr_b32 s35, s%d, 4" % pair_sreg)
        A("  s_lshl_b32 s35, s35, 1")
        A("  v_mov_b32 v%d, 0" % (X + 3))
        A("  buffer_load_ushort v%d, v%d, s[60:63], s35 offen" % (X + 7, X + 3))
        A("  s_waitcnt vmcnt(2)")
        A("  v_lshlrev_b32 v%d, 16, v%d" % (X + 8, X + 4))
        A("  v_and_b32 v%d, 0xffff0000, v%d" % (X + 9, X + 4))
        A("  v_lshlrev_b32 v%d, 16, v%d" % (X + 10, X + 5))
        A("  v_and_b32 v%d, 0xffff0000, v%d" % (X + 11, X + 5))
        A("  v_mul_f32 v%d, v%d, v%d" % (X + 8, X + 8, X + 10))
        A("  v_fmac_f32 v%d, v%d, v%d" % (X + 8, X + 9, X + 11))
        wave_reduce(X + 8, "v_add_f32", X + 9)
        A("  s_waitcnt vmcnt(0)")
        A("  v_lshlrev_b32 v%d, 16, v%d" % (X + 7, X + 7))
        A("  v_sub_f32 v%d, 1.0, v%d" % (X + 7, X + 7))
        A("  v_mul_f32 v%d, 0xceabfb8f, v%d" % (X + 7, X + 7))
        A("  v_fma_f32 v%d, v%d, s32, v%d" % (X + 8, X + 8, X + 7))
        A("  v_lshlrev_b32 v%d, 16, v%d" % (X + 6, X + 6))
        A("  v_max_f32 v%d, v%d, v%d" % (X + 9, X, X + 8))
        wave_reduce(X + 9, "v_max_f32", X + 10)
        A("  v_sub_f32 v%d, v%d, v%d" % (X, X, X + 9))
        A("  v_exp_f32 v%d, v%d" % (X, X))
        A("  v_sub_f32 v%d, v%d, v%d" % (X + 8, X + 8, X + 9))
        A("  v_exp_f32 v%d, v%d" % (X + 8, X + 8))
        A("  v_mul_f32 v%d, v%d, v%d" % (X + 1, X, X + 1))
        wave_reduce(X + 1, "v_add_f32", X + 10)
        A("  v_add_f32 v%d, v%d, v%d" % (X + 1, X + 1, X + 8))
        A("  v_mul_f32 v%d, v%d, v%d" % (X + 11, X + 8, X + 6))
        for b in range(0, CPP, 16):
            for s in range(16):
                A("  v_readlane_b32 s%d, v%d, %d" % (80 + s, X, b + s))
            A("  s_nop 1")
            for s in range(16):
                A("  v_fma_f32 v%d, s%d, v%d, v%d" % (X + 11, 80 + s, OB + b + s, X + 11))
        A("  v_rcp_f32 v%d, v%d" % (X + 1, X + 1))
        A("  s_nop 0")
        A("  v_mul_f32 v%d, v%d, v%d" % (X + 11, X + 11, X + 1))
        A("  v_cvt_pk_bf16_f32 v%d, v%d, v%d" % (X + 11, X + 11, X + 11))
        A("  v_lshlrev_b32 v%d, 1, v0" % (X + 10))
        A("  s_lshl_b32 s35, s%d, 9" % pair_sreg)
        A("  buffer_store_short v%d, v%d, s[64:67], s35 offen" % (X + 11, X + 10))
    loadQ(0); loadK(0); loadV(0)
    for i in range(NIT):
        buf = (i & 1) * LBUF
        wait_for("K%d" % i)
        for t in range(2):
            for s in range(4):
                kb = KB + 16 * t + 4 * s
                A("  v_mfma_f32_16x16x32_bf16 v[%d:%d], v[%d:%d], v[%d:%d], %s" % (
                    D + 4 * t, D + 4 * t + 3, kb, kb + 3, Q + 4 * s, Q + 4 * s + 3,
                    "0" if s == 0 else "v[%d:%d]" % (D + 4 * t, D + 4 * t + 3)))
        if i + 1 < NIT:
            loadQ(i + 1); loadK(i + 1)
        else:
            A("  s_nop 7")
        A("  s_nop 1")
        A("  v_max3_f32 v%d, v%d, v%d, v%d" % (M, D, D + 1, D + 2))
        A("  v_max3_f32 v%d, v%d, v%d, v%d" % (M, M, D + 3, D + 4))
        A("  v_max3_f32 v%d, v%d, v%d, v%d" % (M, M, D + 5, D + 6))
        A("  v_max_f32 v%d, v%d, v%d" % (M, M, D + 7))
        A("  v_mul_f32 v%d, s32, v%d" % (M, M))
        for j in range(8):
            A("  v_fma_f32 v%d, v%d, s32, -v%d" % (P + j, D + j, M))
        for j in range(8):
            A("  v_exp_f32 v%d, v%d" % (P + j, P + j))
        A("  s_nop 1")
        for j in range(8):
            A("  v_mov_b32_dpp v%d, v%d quad_perm:[1,0,3,2] row_mask:0xf bank_mask:0xf" % (PO + j, P + j))
        A("  v_add_f32 v%d, v%d, v%d" % (T0, P, P + 1))
        A("  v_add_f32 v%d, v%d, v%d" % (T1, P + 2, P + 3))
        A("  v_add_f32 v%d, v%d, v%d" % (L, P + 4, P + 5))
        A("  v_add_f32 v%d, v%d, v%d" % (T0, T0, T1))
        A("  v_add_f32 v%d, v%d, v%d" % (T1, P + 6, P + 7))
        A("  v_add_f32 v%d, v%d, v%d" % (L, L, T1))
        A("  v_add_f32 v%d, v%d, v%d" % (L, L, T0))
        wait_for("V%d" % i)
        for t in range(2):
            for j in range(4):
                for k in range(4):
                    r = VB + 16 * t + 4 * j + k
                    u = U + 2 * (k % 2)
                    pj = 4 * t + j
                    op = "v_mul_f32" if pj == 0 else "v_fmac_f32"
                    A("  v_lshlrev_b32 v%d, 16, v%d" % (u, r))
                    A("  v_and_b32 v%d, 0xffff0000, v%d" % (u + 1, r))
                    A("  %s v%d, v%d, v%d" % (op, ACC + 2 * k, P + pj, u))
                    A("  %s v%d, v%d, v%d" % (op, ACC + 2 * k + 1, P + pj, u + 1))
                    A("  %s v%d, v%d, v%d" % (op, ACO + 2 * k, PO + pj, u))
                    A("  %s v%d, v%d, v%d" % (op, ACO + 2 * k + 1, PO + pj, u + 1))
        if i + 1 < NIT:
            loadV(i + 1)
        A("  ds_write_b128 v8, v[%d:%d] offset:%d" % (ACC, ACC + 3, buf))
        A("  ds_write_b128 v8, v[%d:%d] offset:%d" % (ACC + 4, ACC + 7, buf + 16))
        A("  ds_write_b128 v9, v[%d:%d] offset:%d" % (ACO, ACO + 3, buf))
        A("  ds_write_b128 v9, v[%d:%d] offset:%d" % (ACO + 4, ACO + 7, buf + 16))
        A("  s_mov_b64 exec, s[72:73]")
        A("  ds_write_b64 v10, v[%d:%d] offset:%d" % (M, M + 1, buf))
        A("  s_mov_b64 exec, -1")
        A("  s_cmp_ge_u32 s30, 4")
        A("  s_cbranch_scc1 L_bar%d" % i)
        A("  s_waitcnt vmcnt(%d)" % len(out))
        if i >= 2:
            A("  s_cmp_lg_u32 s30, 0")
            A("  s_cbranch_scc1 L_bar%d" % i)
            A("  v_mov_b32 v%d, %d" % (X, LDS_FLAG + 4 * ((i - 2) & 1)))
            A("  s_mov_b64 exec, s[76:77]")
            A("  ds_write_b32 v%d, v%d" % (X, RA + ((i - 2) & 1)))
            A("  s_mov_b64 exec, -1")
        A("L_bar%d:" % i)
        A("  s_waitcnt lgkmcnt(0)")
        A("  s_barrier")
        if i + 1 < NIT:
            A("  s_cmp_ge_u32 s30, 4")
            A("  s_cbranch_scc1 L_next%d" % i)
        else:
            A("  s_cmp_ge_u32 s30, 4")
            A("  s_cbranch_scc1 L_end")
        if i >= 1:
            A("  s_cmp_lg_u32 s30, 0")
            A("  s_cbranch_scc1 L_noat%d" % i)
            A("  v_mov_b32 v%d, 1" % (RA + ((i - 1) & 1)))
            A("  v_mov_b32 v%d, 0" % X)
            A("  s_add_u32 s33, s28, %d" % ((i - 1) * (NWG // CPP)))
            A("  s_lshl_b32 s33, s33, 2")
            A("  s_mov_b64 exec, s[76:77]")
            A("  buffer_atomic_add v%d, v%d, s[68:71], s33 offen sc0 sc1" % (RA + ((i - 1) & 1), X))
            A("  s_mov_b64 exec, -1")
            A("L_noat%d:" % i)
        if i >= 2:
            A("  v_mov_b32 v%d, %d" % (X + 12, LDS_FLAG + 4 * ((i - 2) & 1)))
            A("  ds_read_b32 v%d, v%d" % (X + 13, X + 12))
        A("  ds_read_b64 v[%d:%d], v13 offset:%d" % (X, X + 1, buf))
        for sp in range(32):
            A("  ds_read_b32 v%d, v11 offset:%d" % (OB + sp, buf + 1024 * sp))
        A("  s_waitcnt lgkmcnt(15)")
        A("  s_waitcnt lgkmcnt(0)")
        A("  v_mov_b32 v%d, v%d" % (X + 2, X))
        wave_reduce(X + 2, "v_max_f32", X + 3, 5)
        A("  v_sub_f32 v%d, v%d, v%d" % (X, X, X + 2))
        A("  v_exp_f32 v%d, v%d" % (X, X))
        A("  s_nop 0")
        A("  v_mul_f32 v%d, v%d, v%d" % (X + 3, X, X + 1))
        wave_reduce(X + 3, "v_add_f32", X + 4, 5)
        A("  v_mov_b32 v%d, 0" % (X + 5))
        for b in range(0, 32, 16):
            for s in range(16):
                A("  v_readlane_b32 s%d, v%d, %d" % (80 + s, X, b + s))
            A("  s_nop 1")
            for s in range(16):
                A("  v_fma_f32 v%d, s%d, v%d, v%d" % (X + 5, 80 + s, OB + b + s, X + 5))
        A("  s_add_u32 s33, s2, %d" % (i * NWG))
        A("  s_lshl_b32 s35, s33, 10")
        A("  buffer_store_dword v%d, v11, s[24:27], s35 offen sc1" % (X + 5))
        A("  s_lshl_b32 s35, s33, 4")
        A("  s_add_u32 s35, s35, %d" % MLBASE)
        A("  s_mov_b64 exec, s[74:75]")
        A("  buffer_store_dwordx2 v[%d:%d], v15, s[24:27], s35 offen sc1" % (X + 2, X + 3))
        A("  s_mov_b64 exec, -1")
        if i >= 2:
            A("  v_readfirstlane_b32 s33, v%d" % (X + 13))
            A("  s_nop 3")
            A("  s_cmp_lg_u32 s33, %d" % (CPP - 1))
            A("  s_cbranch_scc1 L_next%d" % i)
            A("  s_add_u32 s36, s28, %d" % ((i - 2) * (NWG // CPP)))
            combine(36, i)
        A("L_next%d:" % i)
    l = NIT - 1
    A("  s_waitcnt vmcnt(0)")
    A("  s_cmp_lg_u32 s30, 0")
    A("  s_cbranch_scc1 L_e1")
    A("  v_mov_b32 v%d, %d" % (X, LDS_FLAG + 4 * ((l - 1) & 1)))
    A("  s_mov_b64 exec, s[76:77]")
    A("  ds_write_b32 v%d, v%d" % (X, RA + ((l - 1) & 1)))
    A("  s_mov_b64 exec, -1")
    A("  s_waitcnt lgkmcnt(0)")
    A("L_e1:")
    A("  s_barrier")
    A("  s_cmp_lg_u32 s30, 0")
    A("  s_cbranch_scc1 L_e2")
    A("  v_mov_b32 v%d, 1" % (RA + (l & 1)))
    A("  v_mov_b32 v%d, 0" % X)
    A("  s_add_u32 s33, s28, %d" % (l * (NWG // CPP)))
    A("  s_lshl_b32 s33, s33, 2")
    A("  s_mov_b64 exec, s[76:77]")
    A("  buffer_atomic_add v%d, v%d, s[68:71], s33 offen sc0 sc1" % (RA + (l & 1), X))
    A("  s_mov_b64 exec, -1")
    A("L_e2:")
    A("  v_mov_b32 v%d, %d" % (X + 12, LDS_FLAG + 4 * ((l - 1) & 1)))
    A("  ds_read_b32 v%d, v%d" % (X + 13, X + 12))
    A("  s_waitcnt lgkmcnt(0)")
    A("  v_readfirstlane_b32 s33, v%d" % (X + 13))
    A("  s_nop 3")
    A("  s_cmp_lg_u32 s33, %d" % (CPP - 1))
    A("  s_cbranch_scc1 L_e3")
    A("  s_add_u32 s36, s28, %d" % ((l - 1) * (NWG // CPP)))
    combine(36, 100)
    A("L_e3:")
    A("  s_waitcnt vmcnt(0)")
    A("  s_cmp_lg_u32 s30, 0")
    A("  s_cbranch_scc1 L_e4")
    A("  v_mov_b32 v%d, %d" % (X, LDS_FLAG + 4 * (l & 1)))
    A("  s_mov_b64 exec, s[76:77]")
    A("  ds_write_b32 v%d, v%d" % (X, RA + (l & 1)))
    A("  s_mov_b64 exec, -1")
    A("  s_waitcnt lgkmcnt(0)")
    A("L_e4:")
    A("  s_barrier")
    A("  v_mov_b32 v%d, %d" % (X + 12, LDS_FLAG + 4 * (l & 1)))
    A("  ds_read_b32 v%d, v%d" % (X + 13, X + 12))
    A("  s_waitcnt lgkmcnt(0)")
    A("  v_readfirstlane_b32 s33, v%d" % (X + 13))
    A("  s_nop 3")
    A("  s_cmp_lg_u32 s33, %d" % (CPP - 1))
    A("  s_cbranch_scc1 L_end")
    A("  s_add_u32 s36, s28, %d" % (l * (NWG // CPP)))
    combine(36, 101)
    A("L_end:")
    A("  s_endpgm")
    A('.section .rodata,"a"')
    A(".p2align 6")
    A(".amdhsa_kernel %s" % K)
    A("  .amdhsa_next_free_vgpr 232")
    A("  .amdhsa_next_free_sgpr 96")
    A("  .amdhsa_accum_offset 232")
    A("  .amdhsa_group_segment_fixed_size 0")
    A("  .amdhsa_kernarg_size 72")
    A("  .amdhsa_user_sgpr_count 2")
    A("  .amdhsa_user_sgpr_kernarg_segment_ptr 1")
    A("  .amdhsa_system_sgpr_workgroup_id_x 1")
    A(".end_amdhsa_kernel")
    return "\n".join(o) + "\n"

if __name__ == "__main__":
    outp = sys.argv[1]
    kw = {}
    for a in sys.argv[2:]:
        k, v = a.split("=")
        kw[k] = int(v) if v.isdigit() else v
    open(outp, "w").write(gen(**kw))
```

```python
import sys, math
NAME = "standalone__tree_speculative_verify_tree_attention_over_candidate_token_tree__decode"

def gen(ldf="", NWG=256, NW=8):
    TPW = 16 // NW
    NCH = 2048
    NIT = NCH // NWG
    assert NIT == NW or True
    CPP = 64
    MLBASE = NCH * 1024
    LDS_ML = NIT * NW * 1024
    LDS_FLAG = LDS_ML + NIT * NW * 16
    LDS_BYTES = LDS_FLAG + 64
    o = []
    A = o.append
    hdr = open("cdna_kernels/%s.s.ref" % NAME).read().split("\n")
    for l in hdr:
        if l.startswith("; @launch"):
            continue
        if l.startswith(";"):
            A(l)
        else:
            break
    A("; @launch grid=(%d,1,1) block=(%d,1,1) lds=%d" % (NWG, NW * 64, LDS_BYTES))
    A('.amdgcn_target "amdgcn-amd-amdhsa--gfx950"')
    A(".text")
    K = NAME + "_kernel"
    A(".globl %s" % K)
    A(".p2align 8")
    A(".type %s,@function" % K)
    A("%s:" % K)
    A("  s_cmp_ge_u32 s2, %d" % NWG)
    A("  s_cbranch_scc1 L_end")
    A("  s_load_dwordx4 s[4:7], s[0:1], 0")
    A("  s_load_dwordx2 s[8:9], s[0:1], 16")
    A("  s_load_dwordx2 s[10:11], s[0:1], 64")
    A("  s_load_dwordx8 s[40:47], s[0:1], 24")
    A("  s_load_dwordx2 s[48:49], s[0:1], 56")
    A("  v_lshrrev_b32 v1, 6, v0")
    A("  v_and_b32 v2, 63, v0")
    A("  s_nop 0")
    A("  v_readfirstlane_b32 s30, v1")
    A("  s_mov_b32 s32, 0x3e0293ee")
    A("  v_and_b32 v3, 15, v2")
    A("  v_lshrrev_b32 v4, 4, v2")
    A("  v_lshlrev_b32 v5, 8, v3")
    A("  v_lshl_add_u32 v5, v4, 4, v5")
    A("  v_lshlrev_b32 v6, 4, v3")
    A("  v_lshl_add_u32 v6, v4, 10, v6")
    A("  v_and_b32 v7, 1, v2")
    A("  v_lshlrev_b32 v7, 8, v7")
    A("  v_lshl_add_u32 v7, v4, 4, v7")
    A("  v_and_b32 v8, 1, v2")
    A("  v_lshlrev_b32 v8, 9, v8")
    A("  v_lshl_add_u32 v8, v3, 5, v8")
    A("  s_lshl_b32 s33, s30, 10")
    A("  v_add_u32 v8, s33, v8")
    A("  v_xor_b32 v9, 512, v8")
    A("  v_lshlrev_b32 v10, 3, v2")
    A("  s_lshl_b32 s33, s30, 4")
    A("  s_add_u32 s33, s33, %d" % LDS_ML)
    A("  v_add_u32 v10, s33, v10")
    A("  v_lshlrev_b32 v11, 2, v0")
    A("  v_lshrrev_b32 v12, 7, v0")
    A("  v_lshl_add_u32 v14, v2, 1, v12")
    A("  v_lshlrev_b32 v14, 3, v14")
    for n, x in enumerate((1, 2, 4, 8, 16, 32)):
        A("  v_xor_b32 v%d, %d, v2" % (16 + n, x))
        A("  v_lshlrev_b32 v%d, 2, v%d" % (16 + n, 16 + n))
    A("  v_cmp_gt_u32 s[72:73], 16, v2")
    A("  v_cmp_gt_u32 s[74:75], 2, v2")
    A("  v_cmp_eq_u32 s[76:77], 0, v2")
    A("  v_and_b32 v22, 127, v0")
    A("  s_waitcnt lgkmcnt(0)")
    for (d, p, n) in ((12, 4, 16384), (16, 6, 0x8000000), (20, 8, 0x8000000), (24, 10, 0x1000000),
                      (52, 40, 8192), (56, 42, 8192), (60, 44, 4), (64, 46, 16384), (68, 48, 256)):
        A("  s_mov_b32 s%d, s%d" % (d, p))
        A("  s_and_b32 s%d, s%d, 0xffff" % (d + 1, p + 1))
        A("  s_mov_b32 s%d, 0x%x" % (d + 2, n))
        A("  s_mov_b32 s%d, 0x00020000" % (d + 3))
    A("  s_lshl_b32 s31, s2, 16")
    A("  s_mul_i32 s33, s30, %d" % (4096 * TPW))
    A("  s_add_u32 s31, s31, s33")
    A("  s_lshr_b32 s28, s2, 6")
    NP = 4 * TPW
    Q = 24
    KB = 40
    VB = KB + 16 * TPW
    D = VB + 16 * TPW
    P = D + NP
    PO = P + NP
    ACC = PO + NP
    ACO = ACC + 8
    M = ACO + 8
    L, T0, T1, AL, ALO = M + 1, M + 2, M + 3, M + 4, M + 5
    U = M + 6
    BT = U + 4
    X = BT + 18
    X += X % 2
    OB = X + 16
    NV = OB + 64
    out = []
    def wait_for(tag):
        idx = [i for i, x in enumerate(out) if x == tag]
        if not idx:
            return
        last = max(idx)
        A("  s_waitcnt vmcnt(%d)" % (len(out) - 1 - last))
        del out[: last + 1]
    def loadQ(i):
        A("  s_add_u32 s34, s28, %d" % (i * (NWG // CPP)))
        A("  s_lshl_b32 s34, s34, 9")
        for s in range(4):
            A("  buffer_load_dwordx4 v[%d:%d], v7, s[12:15], s34 offen offset:%d" % (Q + 4 * s, Q + 4 * s + 3, 64 * s))
        out.extend(["Q%d" % i] * 4)
    def loadK(i):
        for t in range(TPW):
            A("  s_add_u32 s33, s31, %d" % (i * NWG * 65536 + t * 4096))
            for s in range(4):
                b = KB + 16 * t + 4 * s
                A("  buffer_load_dwordx4 v[%d:%d], v5, s[16:19], s33 offen offset:%d %s" % (b, b + 3, 64 * s, ldf))
        out.extend(["K%d" % i] * 4 * TPW)
    def loadV(i):
        for t in range(TPW):
            A("  s_add_u32 s33, s31, %d" % (i * NWG * 65536 + t * 4096))
            for j in range(4):
                b = VB + 16 * t + 4 * j
                A("  buffer_load_dwordx4 v[%d:%d], v6, s[20:23], s33 offen offset:%d %s" % (b, b + 3, 256 * j, ldf))
        out.extend(["V%d" % i] * 4 * TPW)
    def wave_reduce(reg, op, tmp, nbits=6):
        for n in range(nbits):
            A("  ds_bpermute_b32 v%d, v%d, v%d" % (tmp, 16 + n, reg))
            A("  s_waitcnt lgkmcnt(0)")
            A("  %s v%d, v%d, v%d" % (op, reg, reg, tmp))
    loadQ(0); loadK(0); loadV(0)
    for i in range(NIT):
        wait_for("K%d" % i)
        for t in range(TPW):
            for s in range(4):
                kb = KB + 16 * t + 4 * s
                A("  v_mfma_f32_16x16x32_bf16 v[%d:%d], v[%d:%d], v[%d:%d], %s" % (
                    D + 4 * t, D + 4 * t + 3, kb, kb + 3, Q + 4 * s, Q + 4 * s + 3,
                    "0" if s == 0 else "v[%d:%d]" % (D + 4 * t, D + 4 * t + 3)))
        if i + 1 < NIT:
            loadQ(i + 1); loadK(i + 1)
        else:
            A("  s_nop 7")
        A("  s_nop 1")
        A("  v_max3_f32 v%d, v%d, v%d, v%d" % (T0, D, D + 1, D + 2))
        A("  v_max_f32 v%d, v%d, v%d" % (T0, T0, D + 3))
        for j in range(4, NP, 2):
            A("  v_max3_f32 v%d, v%d, v%d, v%d" % (T0, T0, D + j, D + j + 1))
        A("  ds_bpermute_b32 v%d, v20, v%d" % (T1, T0))
        A("  s_waitcnt lgkmcnt(0)")
        A("  v_max_f32 v%d, v%d, v%d" % (T0, T0, T1))
        A("  ds_bpermute_b32 v%d, v21, v%d" % (T1, T0))
        A("  s_waitcnt lgkmcnt(0)")
        A("  v_max_f32 v%d, v%d, v%d" % (T0, T0, T1))
        A("  v_mul_f32 v%d, s32, v%d" % (M, T0))
        for j in range(NP):
            A("  v_fma_f32 v%d, v%d, s32, -v%d" % (P + j, D + j, M))
        for j in range(NP):
            A("  v_exp_f32 v%d, v%d" % (P + j, P + j))
        A("  s_nop 1")
        for j in range(NP):
            A("  v_mov_b32_dpp v%d, v%d quad_perm:[1,0,3,2] row_mask:0xf bank_mask:0xf" % (PO + j, P + j))
        A("  v_add_f32 v%d, v%d, v%d" % (L, P, P + 1))
        for j in range(2, NP):
            A("  v_add_f32 v%d, v%d, v%d" % (L, L, P + j))
        wait_for("V%d" % i)
        for t in range(TPW):
            for j in range(4):
                for k in range(4):
                    r = VB + 16 * t + 4 * j + k
                    u = U + 2 * (k % 2)
                    pj = 4 * t + j
                    op = "v_mul_f32" if pj == 0 else "v_fmac_f32"
                    A("  v_lshlrev_b32 v%d, 16, v%d" % (u, r))
                    A("  v_and_b32 v%d, 0xffff0000, v%d" % (u + 1, r))
                    A("  %s v%d, v%d, v%d" % (op, ACC + 2 * k, P + pj, u))
                    A("  %s v%d, v%d, v%d" % (op, ACC + 2 * k + 1, P + pj, u + 1))
                    A("  %s v%d, v%d, v%d" % (op, ACO + 2 * k, PO + pj, u))
                    A("  %s v%d, v%d, v%d" % (op, ACO + 2 * k + 1, PO + pj, u + 1))
        if i + 1 < NIT:
            loadV(i + 1)
        vals = [L] + [ACC + k for k in range(16)]
        for a in (20, 21):
            for n, r in enumerate(vals):
                A("  ds_bpermute_b32 v%d, v%d, v%d" % (BT + n, a, r))
            A("  s_waitcnt lgkmcnt(0)")
            for n, r in enumerate(vals):
                A("  v_add_f32 v%d, v%d, v%d" % (r, r, BT + n))
        po = i * NW * 1024
        A("  s_mov_b64 exec, s[72:73]")
        A("  ds_write_b128 v8, v[%d:%d] offset:%d" % (ACC, ACC + 3, po))
        A("  ds_write_b128 v8, v[%d:%d] offset:%d" % (ACC + 4, ACC + 7, po + 16))
        A("  ds_write_b128 v9, v[%d:%d] offset:%d" % (ACO, ACO + 3, po))
        A("  ds_write_b128 v9, v[%d:%d] offset:%d" % (ACO + 4, ACO + 7, po + 16))
        A("  s_mov_b64 exec, s[74:75]")
        A("  ds_write_b64 v10, v[%d:%d] offset:%d" % (M, M + 1, i * NW * 16))
        A("  s_mov_b64 exec, -1")
    A("  s_waitcnt lgkmcnt(0)")
    A("  s_barrier")
    if NW > NIT:
        A("  s_cmp_ge_u32 s30, %d" % NIT)
        A("  s_cbranch_scc1 L_postmerge")
    for rep in range(max(1, NIT // NW)):
        A("  s_add_u32 s36, s30, %d" % (rep * NW))
        A("  s_mul_i32 s33, s36, %d" % (NW * 1024))
        A("  v_lshlrev_b32 v%d, 4, v2" % X)
        A("  v_add_u32 v%d, s33, v%d" % (X, X))
        for w in range(NW):
            A("  ds_read_b128 v[%d:%d], v%d offset:%d" % (OB + 4 * w, OB + 4 * w + 3, X, 1024 * w))
        A("  s_mul_i32 s33, s36, %d" % (NW * 16))
        A("  s_add_u32 s33, s33, %d" % LDS_ML)
        A("  v_lshrrev_b32 v%d, 5, v2" % (X + 1))
        A("  v_lshlrev_b32 v%d, 3, v%d" % (X + 1, X + 1))
        A("  v_add_u32 v%d, s33, v%d" % (X + 1, X + 1))
        MLR = OB + 4 * NW
        for w in range(NW):
            A("  ds_read_b64 v[%d:%d], v%d offset:%d" % (MLR + 2 * w, MLR + 2 * w + 1, X + 1, 16 * w))
        A("  s_waitcnt lgkmcnt(0)")
        A("  v_mov_b32 v%d, v%d" % (X + 2, MLR))
        for w in range(1, NW):
            A("  v_max_f32 v%d, v%d, v%d" % (X + 2, X + 2, MLR + 2 * w))
        for w in range(NW):
            A("  v_sub_f32 v%d, v%d, v%d" % (MLR + 2 * w, MLR + 2 * w, X + 2))
        for w in range(NW):
            A("  v_exp_f32 v%d, v%d" % (MLR + 2 * w, MLR + 2 * w))
        A("  s_nop 0")
        A("  v_mul_f32 v%d, v%d, v%d" % (X + 3, MLR, MLR + 1))
        for k in range(4):
            A("  v_mul_f32 v%d, v%d, v%d" % (X + 4 + k, MLR, OB + k))
        for w in range(1, NW):
            A("  v_fmac_f32 v%d, v%d, v%d" % (X + 3, MLR + 2 * w, MLR + 2 * w + 1))
            for k in range(4):
                A("  v_fmac_f32 v%d, v%d, v%d" % (X + 4 + k, MLR + 2 * w, OB + 4 * w + k))
        A("  s_mul_i32 s33, s36, %d" % NWG)
        A("  s_add_u32 s33, s33, s2")
        A("  s_lshl_b32 s35, s33, 10")
        A("  v_lshlrev_b32 v%d, 4, v2" % X)
        A("  buffer_store_dwordx4 v[%d:%d], v%d, s[24:27], s35 offen sc1" % (X + 4, X + 7, X))
        A("  s_lshl_b32 s35, s33, 4")
        A("  s_add_u32 s35, s35, %d" % MLBASE)
        A("  v_lshrrev_b32 v%d, 2, v2" % (X + 1))
        A("  v_and_b32 v%d, 31, v2" % (X + 8))
        A("  v_cmp_eq_u32 vcc, 0, v%d" % (X + 8))
        A("  s_and_b64 exec, exec, vcc")
        A("  buffer_store_dwordx2 v[%d:%d], v%d, s[24:27], s35 offen sc1" % (X + 2, X + 3, X + 1))
        A("  s_mov_b64 exec, -1")
        A("  s_waitcnt vmcnt(0)")
        A("  v_mov_b32 v%d, 1" % (X + 8))
        A("  v_mov_b32 v%d, 0" % (X + 9))
        A("  s_lshr_b32 s33, s33, 6")
        A("  s_lshl_b32 s33, s33, 2")
        A("  s_mov_b64 exec, s[76:77]")
        A("  buffer_atomic_add v%d, v%d, s[68:71], s33 offen sc0 sc1" % (X + 8, X + 9))
        A("  s_waitcnt vmcnt(0)")
        A("  s_lshl_b32 s33, s36, 2")
        A("  s_add_u32 s33, s33, %d" % LDS_FLAG)
        A("  v_mov_b32 v%d, s33" % (X + 9))
        A("  ds_write_b32 v%d, v%d" % (X + 9, X + 8))
        A("  s_mov_b64 exec, -1")
    A("L_postmerge:")
    A("  s_waitcnt lgkmcnt(0)")
    A("  s_barrier")
    A("  s_cmp_ge_u32 s30, 4")
    A("  s_cbranch_scc1 L_end")
    A("  s_mov_b32 s37, 0")
    A("L_cloop:")
    A("  s_lshl_b32 s33, s37, 2")
    A("  s_add_u32 s33, s33, %d" % LDS_FLAG)
    A("  v_mov_b32 v%d, s33" % X)
    A("  ds_read_b32 v%d, v%d" % (X + 1, X))
    A("  s_waitcnt lgkmcnt(0)")
    A("  v_readfirstlane_b32 s33, v%d" % (X + 1))
    A("  s_nop 3")
    A("  s_cmp_lg_u32 s33, %d" % (CPP - 1))
    A("  s_cbranch_scc1 L_cnext")
    A("  s_mul_i32 s36, s37, %d" % (NWG // CPP))
    A("  s_add_u32 s36, s36, s28")
    A("  s_lshl_b32 s35, s36, 16")
    for s in range(CPP):
        if s % 4 == 0:
            A("  s_add_u32 s33, s35, %d" % (1024 * s))
        A("  buffer_load_dword v%d, v11, s[24:27], s33 offen offset:%d sc1" % (OB + s, 1024 * (s % 4)))
    A("  s_lshl_b32 s35, s36, 10")
    A("  s_add_u32 s35, s35, %d" % MLBASE)
    A("  buffer_load_dwordx2 v[%d:%d], v14, s[24:27], s35 offen sc1" % (X, X + 1))
    A("  s_lshl_b32 s35, s36, 9")
    A("  v_lshlrev_b32 v%d, 2, v2" % (X + 2))
    A("  v_lshl_add_u32 v%d, v12, 8, v%d" % (X + 3, X + 2))
    A("  buffer_load_dword v%d, v%d, s[12:15], s35 offen" % (X + 4, X + 3))
    A("  s_lshl_b32 s35, s36, 8")
    A("  buffer_load_dword v%d, v%d, s[52:55], s35 offen" % (X + 5, X + 2))
    A("  v_lshlrev_b32 v%d, 1, v22" % (X + 3))
    A("  buffer_load_ushort v%d, v%d, s[56:59], s35 offen" % (X + 6, X + 3))
    A("  s_lshr_b32 s35, s36, 4")
    A("  s_lshl_b32 s35, s35, 1")
    A("  v_mov_b32 v%d, 0" % (X + 3))
    A("  buffer_load_ushort v%d, v%d, s[60:63], s35 offen" % (X + 7, X + 3))
    A("  s_waitcnt vmcnt(2)")
    A("  v_lshlrev_b32 v%d, 16, v%d" % (X + 8, X + 4))
    A("  v_and_b32 v%d, 0xffff0000, v%d" % (X + 9, X + 4))
    A("  v_lshlrev_b32 v%d, 16, v%d" % (X + 10, X + 5))
    A("  v_and_b32 v%d, 0xffff0000, v%d" % (X + 11, X + 5))
    A("  v_mul_f32 v%d, v%d, v%d" % (X + 8, X + 8, X + 10))
    A("  v_fmac_f32 v%d, v%d, v%d" % (X + 8, X + 9, X + 11))
    wave_reduce(X + 8, "v_add_f32", X + 9)
    A("  s_waitcnt vmcnt(0)")
    A("  v_lshlrev_b32 v%d, 16, v%d" % (X + 7, X + 7))
    A("  v_sub_f32 v%d, 1.0, v%d" % (X + 7, X + 7))
    A("  v_mul_f32 v%d, 0xceabfb8f, v%d" % (X + 7, X + 7))
    A("  v_fma_f32 v%d, v%d, s32, v%d" % (X + 8, X + 8, X + 7))
    A("  v_lshlrev_b32 v%d, 16, v%d" % (X + 6, X + 6))
    A("  v_max_f32 v%d, v%d, v%d" % (X + 9, X, X + 8))
    wave_reduce(X + 9, "v_max_f32", X + 10)
    A("  v_sub_f32 v%d, v%d, v%d" % (X, X, X + 9))
    A("  v_exp_f32 v%d, v%d" % (X, X))
    A("  v_sub_f32 v%d, v%d, v%d" % (X + 8, X + 8, X + 9))
    A("  v_exp_f32 v%d, v%d" % (X + 8, X + 8))
    A("  v_mul_f32 v%d, v%d, v%d" % (X + 1, X, X + 1))
    wave_reduce(X + 1, "v_add_f32", X + 10)
    A("  v_add_f32 v%d, v%d, v%d" % (X + 1, X + 1, X + 8))
    A("  v_mul_f32 v%d, v%d, v%d" % (X + 11, X + 8, X + 6))
    for b in range(0, CPP, 16):
        for s in range(16):
            A("  v_readlane_b32 s%d, v%d, %d" % (80 + s, X, b + s))
        A("  s_nop 1")
        for s in range(16):
            A("  v_fma_f32 v%d, s%d, v%d, v%d" % (X + 11, 80 + s, OB + b + s, X + 11))
    A("  v_rcp_f32 v%d, v%d" % (X + 1, X + 1))
    A("  s_nop 0")
    A("  v_mul_f32 v%d, v%d, v%d" % (X + 11, X + 11, X + 1))
    A("  v_cvt_pk_bf16_f32 v%d, v%d, v%d" % (X + 11, X + 11, X + 11))
    A("  v_lshlrev_b32 v%d, 1, v0" % (X + 10))
    A("  s_lshl_b32 s35, s36, 9")
    A("  buffer_store_short v%d, v%d, s[64:67], s35 offen" % (X + 11, X + 10))
    A("L_cnext:")
    A("  s_add_u32 s37, s37, 1")
    A("  s_cmp_lt_u32 s37, %d" % NIT)
    A("  s_cbranch_scc1 L_cloop")
    A("L_end:")
    A("  s_endpgm")
    A('.section .rodata,"a"')
    A(".p2align 6")
    A(".amdhsa_kernel %s" % K)
    nv = (NV + 7) // 8 * 8
    A("  .amdhsa_next_free_vgpr %d" % nv)
    A("  .amdhsa_next_free_sgpr 96")
    A("  .amdhsa_accum_offset %d" % nv)
    A("  .amdhsa_group_segment_fixed_size 0")
    A("  .amdhsa_kernarg_size 72")
    A("  .amdhsa_user_sgpr_count 2")
    A("  .amdhsa_user_sgpr_kernarg_segment_ptr 1")
    A("  .amdhsa_system_sgpr_workgroup_id_x 1")
    A(".end_amdhsa_kernel")
    return "\n".join(o) + "\n"

if __name__ == "__main__":
    outp = sys.argv[1]
    kw = {}
    for a in sys.argv[2:]:
        k, v = a.split("=")
        kw[k] = int(v) if v.isdigit() else v
    open(outp, "w").write(gen(**kw))
```

```python
import sys, math
NAME = "standalone__tree_speculative_verify_tree_attention_over_candidate_token_tree__decode"

def gen(ldf="", NWG=256, NW=8):
    TPW = 16 // NW
    NCH = 2048
    NIT = NCH // NWG
    assert NIT == NW or True
    CPP = 64
    MLBASE = NCH * 1024
    LDS_ML = NIT * NW * 1024
    LDS_FLAG = LDS_ML + NIT * NW * 16
    LDS_BYTES = LDS_FLAG + 64
    o = []
    A = o.append
    hdr = open("cdna_kernels/%s.s.ref" % NAME).read().split("\n")
    for l in hdr:
        if l.startswith("; @launch"):
            continue
        if l.startswith(";"):
            A(l)
        else:
            break
    A("; @launch grid=(%d,1,1) block=(%d,1,1) lds=%d" % (NWG, NW * 64, LDS_BYTES))
    A('.amdgcn_target "amdgcn-amd-amdhsa--gfx950"')
    A(".text")
    K = NAME + "_kernel"
    A(".globl %s" % K)
    A(".p2align 8")
    A(".type %s,@function" % K)
    A("%s:" % K)
    A("  s_cmp_ge_u32 s2, %d" % NWG)
    A("  s_cbranch_scc1 L_end")
    A("  s_load_dwordx4 s[4:7], s[0:1], 0")
    A("  s_load_dwordx2 s[8:9], s[0:1], 16")
    A("  s_load_dwordx2 s[10:11], s[0:1], 64")
    A("  s_load_dwordx8 s[40:47], s[0:1], 24")
    A("  s_load_dwordx2 s[48:49], s[0:1], 56")
    A("  v_lshrrev_b32 v1, 6, v0")
    A("  v_and_b32 v2, 63, v0")
    A("  s_nop 0")
    A("  v_readfirstlane_b32 s30, v1")
    A("  s_mov_b32 s32, 0x3e0293ee")
    A("  v_and_b32 v3, 15, v2")
    A("  v_lshrrev_b32 v4, 4, v2")
    A("  v_lshlrev_b32 v5, 8, v3")
    A("  v_lshl_add_u32 v5, v4, 4, v5")
    A("  v_lshlrev_b32 v6, 4, v3")
    A("  v_lshl_add_u32 v6, v4, 10, v6")
    A("  v_and_b32 v7, 1, v2")
    A("  v_lshlrev_b32 v7, 8, v7")
    A("  v_lshl_add_u32 v7, v4, 4, v7")
    A("  v_and_b32 v8, 1, v2")
    A("  v_lshlrev_b32 v8, 9, v8")
    A("  v_lshl_add_u32 v8, v3, 5, v8")
    A("  s_lshl_b32 s33, s30, 10")
    A("  v_add_u32 v8, s33, v8")
    A("  v_xor_b32 v9, 512, v8")
    A("  v_lshlrev_b32 v10, 3, v2")
    A("  s_lshl_b32 s33, s30, 4")
    A("  s_add_u32 s33, s33, %d" % LDS_ML)
    A("  v_add_u32 v10, s33, v10")
    A("  v_lshlrev_b32 v11, 2, v0")
    A("  v_lshrrev_b32 v12, 7, v0")
    A("  v_lshl_add_u32 v14, v2, 1, v12")
    A("  v_lshlrev_b32 v14, 3, v14")
    for n, x in enumerate((1, 2, 4, 8, 16, 32)):
        A("  v_xor_b32 v%d, %d, v2" % (16 + n, x))
        A("  v_lshlrev_b32 v%d, 2, v%d" % (16 + n, 16 + n))
    A("  v_cmp_gt_u32 s[72:73], 16, v2")
    A("  v_cmp_gt_u32 s[74:75], 2, v2")
    A("  v_cmp_eq_u32 s[76:77], 0, v2")
    A("  v_and_b32 v22, 127, v0")
    A("  s_waitcnt lgkmcnt(0)")
    for (d, p, n) in ((12, 4, 16384), (16, 6, 0x8000000), (20, 8, 0x8000000), (24, 10, 0x1000000),
                      (52, 40, 8192), (56, 42, 8192), (60, 44, 4), (64, 46, 16384), (68, 48, 256)):
        A("  s_mov_b32 s%d, s%d" % (d, p))
        A("  s_and_b32 s%d, s%d, 0xffff" % (d + 1, p + 1))
        A("  s_mov_b32 s%d, 0x%x" % (d + 2, n))
        A("  s_mov_b32 s%d, 0x00020000" % (d + 3))
    A("  s_lshl_b32 s31, s2, 16")
    A("  s_mul_i32 s33, s30, %d" % (4096 * TPW))
    A("  s_add_u32 s31, s31, s33")
    A("  s_lshr_b32 s28, s2, 6")
    NP = 4 * TPW
    Q = 24
    KB = 40
    VB = KB + 16 * TPW
    D = VB + 16 * TPW
    P = D + NP
    PO = P + NP
    ACC = PO + NP
    ACO = ACC + 8
    M = ACO + 8
    L, T0, T1, AL, ALO = M + 1, M + 2, M + 3, M + 4, M + 5
    U = M + 6
    BT = U + 4
    X = BT + 18
    X += X % 2
    OB = X + 16
    NV = 256
    out = []
    def wait_for(tag):
        idx = [i for i, x in enumerate(out) if x == tag]
        if not idx:
            return
        last = max(idx)
        A("  s_waitcnt vmcnt(%d)" % (len(out) - 1 - last))
        del out[: last + 1]
    def loadQ(i):
        A("  s_add_u32 s34, s28, %d" % (i * (NWG // CPP)))
        A("  s_lshl_b32 s34, s34, 9")
        for s in range(4):
            A("  buffer_load_dwordx4 v[%d:%d], v7, s[12:15], s34 offen offset:%d" % (Q + 4 * s, Q + 4 * s + 3, 64 * s))
        out.extend(["Q%d" % i] * 4)
    def loadK(i):
        for t in range(TPW):
            A("  s_add_u32 s33, s31, %d" % (i * NWG * 65536 + t * 4096))
            for s in range(4):
                b = KB + 16 * t + 4 * s
                A("  buffer_load_dwordx4 v[%d:%d], v5, s[16:19], s33 offen offset:%d %s" % (b, b + 3, 64 * s, ldf))
        out.extend(["K%d" % i] * 4 * TPW)
    def loadV(i):
        for t in range(TPW):
            A("  s_add_u32 s33, s31, %d" % (i * NWG * 65536 + t * 4096))
            for j in range(4):
                b = VB + 16 * t + 4 * j
                A("  buffer_load_dwordx4 v[%d:%d], v6, s[20:23], s33 offen offset:%d %s" % (b, b + 3, 256 * j, ldf))
        out.extend(["V%d" % i] * 4 * TPW)
    def wave_reduce(reg, op, tmp, nbits=6):
        for n in range(nbits):
            A("  ds_bpermute_b32 v%d, v%d, v%d" % (tmp, 16 + n, reg))
            A("  s_waitcnt lgkmcnt(0)")
            A("  %s v%d, v%d, v%d" % (op, reg, reg, tmp))
    loadQ(0); loadK(0); loadV(0)
    for i in range(NIT):
        wait_for("K%d" % i)
        for t in range(TPW):
            for s in range(4):
                kb = KB + 16 * t + 4 * s
                A("  v_mfma_f32_16x16x32_bf16 v[%d:%d], v[%d:%d], v[%d:%d], %s" % (
                    D + 4 * t, D + 4 * t + 3, kb, kb + 3, Q + 4 * s, Q + 4 * s + 3,
                    "0" if s == 0 else "v[%d:%d]" % (D + 4 * t, D + 4 * t + 3)))
        if i + 1 < NIT:
            loadQ(i + 1); loadK(i + 1)
        else:
            A("  s_nop 7")
        A("  s_nop 1")
        A("  v_max3_f32 v%d, v%d, v%d, v%d" % (T0, D, D + 1, D + 2))
        A("  v_max_f32 v%d, v%d, v%d" % (T0, T0, D + 3))
        for j in range(4, NP, 2):
            A("  v_max3_f32 v%d, v%d, v%d, v%d" % (T0, T0, D + j, D + j + 1))
        A("  ds_bpermute_b32 v%d, v20, v%d" % (T1, T0))
        A("  s_waitcnt lgkmcnt(0)")
        A("  v_max_f32 v%d, v%d, v%d" % (T0, T0, T1))
        A("  ds_bpermute_b32 v%d, v21, v%d" % (T1, T0))
        A("  s_waitcnt lgkmcnt(0)")
        A("  v_max_f32 v%d, v%d, v%d" % (T0, T0, T1))
        A("  v_mul_f32 v%d, s32, v%d" % (M, T0))
        for j in range(NP):
            A("  v_fma_f32 v%d, v%d, s32, -v%d" % (P + j, D + j, M))
        for j in range(NP):
            A("  v_exp_f32 v%d, v%d" % (P + j, P + j))
        A("  s_nop 1")
        for j in range(NP):
            A("  v_mov_b32_dpp v%d, v%d quad_perm:[1,0,3,2] row_mask:0xf bank_mask:0xf" % (PO + j, P + j))
        A("  v_add_f32 v%d, v%d, v%d" % (L, P, P + 1))
        for j in range(2, NP):
            A("  v_add_f32 v%d, v%d, v%d" % (L, L, P + j))
        wait_for("V%d" % i)
        for t in range(TPW):
            for j in range(4):
                for k in range(4):
                    r = VB + 16 * t + 4 * j + k
                    u = U + 2 * (k % 2)
                    pj = 4 * t + j
                    op = "v_mul_f32" if pj == 0 else "v_fmac_f32"
                    A("  v_lshlrev_b32 v%d, 16, v%d" % (u, r))
                    A("  v_and_b32 v%d, 0xffff0000, v%d" % (u + 1, r))
                    A("  %s v%d, v%d, v%d" % (op, ACC + 2 * k, P + pj, u))
                    A("  %s v%d, v%d, v%d" % (op, ACC + 2 * k + 1, P + pj, u + 1))
                    A("  %s v%d, v%d, v%d" % (op, ACO + 2 * k, PO + pj, u))
                    A("  %s v%d, v%d, v%d" % (op, ACO + 2 * k + 1, PO + pj, u + 1))
        if i + 1 < NIT:
            loadV(i + 1)
        vals = [L] + [ACC + k for k in range(16)]
        for a in (20, 21):
            for n, r in enumerate(vals):
                A("  ds_bpermute_b32 v%d, v%d, v%d" % (BT + n, a, r))
            A("  s_waitcnt lgkmcnt(0)")
            for n, r in enumerate(vals):
                A("  v_add_f32 v%d, v%d, v%d" % (r, r, BT + n))
        po = i * NW * 1024
        A("  s_mov_b64 exec, s[72:73]")
        A("  ds_write_b128 v8, v[%d:%d] offset:%d" % (ACC, ACC + 3, po))
        A("  ds_write_b128 v8, v[%d:%d] offset:%d" % (ACC + 4, ACC + 7, po + 16))
        A("  ds_write_b128 v9, v[%d:%d] offset:%d" % (ACO, ACO + 3, po))
        A("  ds_write_b128 v9, v[%d:%d] offset:%d" % (ACO + 4, ACO + 7, po + 16))
        A("  s_mov_b64 exec, s[74:75]")
        A("  ds_write_b64 v10, v[%d:%d] offset:%d" % (M, M + 1, i * NW * 16))
        A("  s_mov_b64 exec, -1")
    A("  s_waitcnt lgkmcnt(0)")
    A("  s_barrier")
    if NW > NIT:
        A("  s_cmp_ge_u32 s30, %d" % NIT)
        A("  s_cbranch_scc1 L_postmerge")
    for rep in range(max(1, NIT // NW)):
        A("  s_add_u32 s36, s30, %d" % (rep * NW))
        A("  s_mul_i32 s33, s36, %d" % (NW * 1024))
        A("  v_lshlrev_b32 v%d, 4, v2" % X)
        A("  v_add_u32 v%d, s33, v%d" % (X, X))
        for w in range(NW):
            A("  ds_read_b128 v[%d:%d], v%d offset:%d" % (OB + 4 * w, OB + 4 * w + 3, X, 1024 * w))
        A("  s_mul_i32 s33, s36, %d" % (NW * 16))
        A("  s_add_u32 s33, s33, %d" % LDS_ML)
        A("  v_lshrrev_b32 v%d, 5, v2" % (X + 1))
        A("  v_lshlrev_b32 v%d, 3, v%d" % (X + 1, X + 1))
        A("  v_add_u32 v%d, s33, v%d" % (X + 1, X + 1))
        MLR = OB + 4 * NW
        for w in range(NW):
            A("  ds_read_b64 v[%d:%d], v%d offset:%d" % (MLR + 2 * w, MLR + 2 * w + 1, X + 1, 16 * w))
        A("  s_waitcnt lgkmcnt(0)")
        A("  v_mov_b32 v%d, v%d" % (X + 2, MLR))
        for w in range(1, NW):
            A("  v_max_f32 v%d, v%d, v%d" % (X + 2, X + 2, MLR + 2 * w))
        for w in range(NW):
            A("  v_sub_f32 v%d, v%d, v%d" % (MLR + 2 * w, MLR + 2 * w, X + 2))
        for w in range(NW):
            A("  v_exp_f32 v%d, v%d" % (MLR + 2 * w, MLR + 2 * w))
        A("  s_nop 0")
        A("  v_mul_f32 v%d, v%d, v%d" % (X + 3, MLR, MLR + 1))
        for k in range(4):
            A("  v_mul_f32 v%d, v%d, v%d" % (X + 4 + k, MLR, OB + k))
        for w in range(1, NW):
            A("  v_fmac_f32 v%d, v%d, v%d" % (X + 3, MLR + 2 * w, MLR + 2 * w + 1))
            for k in range(4):
                A("  v_fmac_f32 v%d, v%d, v%d" % (X + 4 + k, MLR + 2 * w, OB + 4 * w + k))
        A("  s_mul_i32 s33, s36, %d" % NWG)
        A("  s_add_u32 s33, s33, s2")
        A("  s_lshl_b32 s35, s33, 10")
        A("  v_lshlrev_b32 v%d, 4, v2" % X)
        A("  buffer_store_dwordx4 v[%d:%d], v%d, s[24:27], s35 offen sc1" % (X + 4, X + 7, X))
        A("  s_lshl_b32 s35, s33, 4")
        A("  s_add_u32 s35, s35, %d" % MLBASE)
        A("  v_lshrrev_b32 v%d, 2, v2" % (X + 1))
        A("  v_and_b32 v%d, 31, v2" % (X + 8))
        A("  v_cmp_eq_u32 vcc, 0, v%d" % (X + 8))
        A("  s_and_b64 exec, exec, vcc")
        A("  buffer_store_dwordx2 v[%d:%d], v%d, s[24:27], s35 offen sc1" % (X + 2, X + 3, X + 1))
        A("  s_mov_b64 exec, -1")
        A("  s_waitcnt vmcnt(0)")
        A("  v_mov_b32 v%d, 1" % (X + 8))
        A("  v_mov_b32 v%d, 0" % (X + 9))
        A("  s_lshr_b32 s33, s33, 6")
        A("  s_lshl_b32 s33, s33, 2")
        A("  s_mov_b64 exec, s[76:77]")
        A("  buffer_atomic_add v%d, v%d, s[68:71], s33 offen sc0 sc1" % (X + 8, X + 9))
        A("  s_waitcnt vmcnt(0)")
        A("  s_mov_b64 exec, -1")
        A("  v_readfirstlane_b32 s33, v%d" % (X + 8))
        A("  s_nop 3")
        A("  s_cmp_lg_u32 s33, %d" % (CPP - 1))
        A("  s_cbranch_scc1 L_end")
        A("  s_mul_i32 s36, s36, %d" % (NWG // CPP))
        A("  s_add_u32 s36, s36, s28")
        A("  v_lshlrev_b32 v8, 4, v2")
        A("  s_lshl_b32 s35, s36, 16")
        RA_, RB_ = 24, 136
        def ldpart(s_, reg):
            if s_ % 4 == 0:
                A("  s_add_u32 s33, s35, %d" % (1024 * s_))
            A("  buffer_load_dwordx4 v[%d:%d], v8, s[24:27], s33 offen offset:%d sc1" % (reg, reg + 3, 1024 * (s_ % 4)))
        A("  s_lshl_b32 s34, s36, 10")
        A("  s_add_u32 s34, s34, %d" % MLBASE)
        A("  buffer_load_dwordx4 v[248:251], v8, s[24:27], s34 offen sc1")
        A("  s_lshl_b32 s34, s36, 9")
        A("  v_lshlrev_b32 v9, 2, v2")
        A("  buffer_load_dword v10, v9, s[12:15], s34 offen")
        A("  buffer_load_dword v11, v9, s[12:15], s34 offen offset:256")
        A("  s_lshl_b32 s34, s36, 8")
        A("  buffer_load_dword v12, v9, s[52:55], s34 offen")
        A("  v_and_b32 v13, 31, v2")
        A("  v_lshlrev_b32 v13, 3, v13")
        A("  buffer_load_dwordx2 v[14:15], v13, s[56:59], s34 offen")
        A("  s_lshr_b32 s34, s36, 4")
        A("  s_lshl_b32 s34, s34, 1")
        A("  v_mov_b32 v13, 0")
        A("  buffer_load_ushort v22, v13, s[60:63], s34 offen")
        for s_ in range(28):
            ldpart(s_, RA_ + 4 * s_)
        for s_ in range(28, 56):
            ldpart(s_, RB_ + 4 * (s_ - 28))
        A("  s_waitcnt vmcnt(56)")
        A("  v_lshlrev_b32 v252, 16, v12")
        A("  v_and_b32 v253, 0xffff0000, v12")
        A("  v_lshlrev_b32 v254, 16, v10")
        A("  v_and_b32 v255, 0xffff0000, v10")
        A("  v_mul_f32 v10, v254, v252")
        A("  v_fmac_f32 v10, v255, v253")
        A("  v_lshlrev_b32 v254, 16, v11")
        A("  v_and_b32 v255, 0xffff0000, v11")
        A("  v_mul_f32 v11, v254, v252")
        A("  v_fmac_f32 v11, v255, v253")
        for n in range(6):
            A("  ds_bpermute_b32 v252, v%d, v10" % (16 + n))
            A("  ds_bpermute_b32 v253, v%d, v11" % (16 + n))
            A("  s_waitcnt lgkmcnt(0)")
            A("  v_add_f32 v10, v10, v252")
            A("  v_add_f32 v11, v11, v253")
        A("  v_lshlrev_b32 v22, 16, v22")
        A("  v_sub_f32 v22, 1.0, v22")
        A("  v_mul_f32 v22, 0xceabfb8f, v22")
        A("  v_fma_f32 v10, v10, s32, v22")
        A("  v_fma_f32 v11, v11, s32, v22")
        A("  v_max_f32 v12, v248, v10")
        A("  v_max_f32 v13, v250, v11")
        for n in range(6):
            A("  ds_bpermute_b32 v252, v%d, v12" % (16 + n))
            A("  ds_bpermute_b32 v253, v%d, v13" % (16 + n))
            A("  s_waitcnt lgkmcnt(0)")
            A("  v_max_f32 v12, v12, v252")
            A("  v_max_f32 v13, v13, v253")
        A("  v_sub_f32 v248, v248, v12")
        A("  v_sub_f32 v250, v250, v13")
        A("  v_sub_f32 v10, v10, v12")
        A("  v_sub_f32 v11, v11, v13")
        A("  v_exp_f32 v248, v248")
        A("  v_exp_f32 v250, v250")
        A("  v_exp_f32 v10, v10")
        A("  v_exp_f32 v11, v11")
        A("  s_nop 0")
        A("  v_mul_f32 v249, v248, v249")
        A("  v_mul_f32 v251, v250, v251")
        for n in range(6):
            A("  ds_bpermute_b32 v252, v%d, v249" % (16 + n))
            A("  ds_bpermute_b32 v253, v%d, v251" % (16 + n))
            A("  s_waitcnt lgkmcnt(0)")
            A("  v_add_f32 v249, v249, v252")
            A("  v_add_f32 v251, v251, v253")
        A("  v_add_f32 v249, v249, v10")
        A("  v_add_f32 v251, v251, v11")
        A("  v_cmp_lt_u32 vcc, 31, v2")
        A("  s_nop 1")
        A("  v_cndmask_b32 v10, v10, v11, vcc")
        A("  v_cndmask_b32 v12, v249, v251, vcc")
        A("  v_lshlrev_b32 v252, 16, v14")
        A("  v_and_b32 v253, 0xffff0000, v14")
        A("  v_lshlrev_b32 v254, 16, v15")
        A("  v_and_b32 v255, 0xffff0000, v15")
        for k in range(4):
            A("  v_mul_f32 v%d, v10, v%d" % (252 + k, 252 + k))
        A("  s_mov_b32 s78, -1")
        A("  s_mov_b32 s79, 0")
        A("  s_mov_b32 s38, 0")
        A("  s_mov_b32 s39, -1")
        def fmas(lst):
            for half, wreg in ((0, 248), (1, 250)):
                if half == 0:
                    A("  s_mov_b64 exec, s[78:79]")
                else:
                    A("  s_mov_b64 exec, s[38:39]")
                for b0 in range(0, len(lst), 16):
                    grp = lst[b0:b0 + 16]
                    for n, (pj, reg) in enumerate(grp):
                        A("  v_readlane_b32 s%d, v%d, %d" % (80 + n, wreg, pj))
                    A("  s_nop 1")
                    for n, (pj, reg) in enumerate(grp):
                        for k in range(4):
                            A("  v_fma_f32 v%d, s%d, v%d, v%d" % (252 + k, 80 + n, reg + k, 252 + k))
            A("  s_mov_b64 exec, -1")
        A("  s_waitcnt vmcnt(28)")
        fmas([(s_, RA_ + 4 * s_) for s_ in range(28)])
        for s_ in range(56, 64):
            ldpart(s_, RA_ + 4 * (s_ - 56))
        A("  s_waitcnt vmcnt(8)")
        fmas([(s_, RB_ + 4 * (s_ - 28)) for s_ in range(28, 56)])
        A("  s_waitcnt vmcnt(0)")
        fmas([(s_, RA_ + 4 * (s_ - 56)) for s_ in range(56, 64)])
        A("  v_rcp_f32 v12, v12")
        A("  s_nop 0")
        for k in range(4):
            A("  v_mul_f32 v%d, v%d, v12" % (252 + k, 252 + k))
        A("  v_cvt_pk_bf16_f32 v252, v252, v253")
        A("  v_cvt_pk_bf16_f32 v253, v254, v255")
        A("  v_lshlrev_b32 v8, 3, v2")
        A("  s_lshl_b32 s35, s36, 9")
        A("  buffer_store_dwordx2 v[252:253], v8, s[64:67], s35 offen")
    A("L_postmerge:")
    A("L_end:")
    A("  s_endpgm")
    A('.section .rodata,"a"')
    A(".p2align 6")
    A(".amdhsa_kernel %s" % K)
    nv = (NV + 7) // 8 * 8
    A("  .amdhsa_next_free_vgpr %d" % nv)
    A("  .amdhsa_next_free_sgpr 96")
    A("  .amdhsa_accum_offset %d" % nv)
    A("  .amdhsa_group_segment_fixed_size 0")
    A("  .amdhsa_kernarg_size 72")
    A("  .amdhsa_user_sgpr_count 2")
    A("  .amdhsa_user_sgpr_kernarg_segment_ptr 1")
    A("  .amdhsa_system_sgpr_workgroup_id_x 1")
    A(".end_amdhsa_kernel")
    return "\n".join(o) + "\n"

if __name__ == "__main__":
    outp = sys.argv[1]
    kw = {}
    for a in sys.argv[2:]:
        k, v = a.split("=")
        kw[k] = int(v) if v.isdigit() else v
    open(outp, "w").write(gen(**kw))
```

```python
import sys, math
NAME = "standalone__tree_speculative_verify_tree_attention_over_candidate_token_tree__decode"

def gen(ldf="", NWG=256, NW=8):
    TPW = 16 // NW
    NCH = 2048
    NIT = NCH // NWG
    CPP = 64
    MLBASE = NCH * 1024
    LDS_ML = NIT * NW * 1024
    LDS_CNT = LDS_ML + NIT * NW * 16
    LDS_BYTES = LDS_CNT + 64
    o = []
    A = o.append
    hdr = open("cdna_kernels/%s.s.ref" % NAME).read().split("\n")
    for l in hdr:
        if l.startswith("; @launch"):
            continue
        if l.startswith(";"):
            A(l)
        else:
            break
    A("; @launch grid=(%d,1,1) block=(%d,1,1) lds=%d" % (NWG, (NW + 1) * 64, LDS_BYTES))
    A('.amdgcn_target "amdgcn-amd-amdhsa--gfx950"')
    A(".text")
    K = NAME + "_kernel"
    A(".globl %s" % K)
    A(".p2align 8")
    A(".type %s,@function" % K)
    A("%s:" % K)
    A("  s_cmp_ge_u32 s2, %d" % NWG)
    A("  s_cbranch_scc1 L_end")
    A("  s_load_dwordx4 s[4:7], s[0:1], 0")
    A("  s_load_dwordx2 s[8:9], s[0:1], 16")
    A("  s_load_dwordx2 s[10:11], s[0:1], 64")
    A("  s_load_dwordx8 s[40:47], s[0:1], 24")
    A("  s_load_dwordx2 s[48:49], s[0:1], 56")
    A("  v_lshrrev_b32 v1, 6, v0")
    A("  v_and_b32 v2, 63, v0")
    A("  s_nop 0")
    A("  v_readfirstlane_b32 s30, v1")
    A("  s_mov_b32 s32, 0x3e0293ee")
    for n, x in enumerate((1, 2, 4, 8, 16, 32)):
        A("  v_xor_b32 v%d, %d, v2" % (16 + n, x))
        A("  v_lshlrev_b32 v%d, 2, v%d" % (16 + n, 16 + n))
    A("  v_cmp_gt_u32 s[72:73], 16, v2")
    A("  v_cmp_gt_u32 s[74:75], 2, v2")
    A("  v_cmp_eq_u32 s[76:77], 0, v2")
    A("  s_waitcnt lgkmcnt(0)")
    for (d, p, n) in ((12, 4, 16384), (16, 6, 0x8000000), (20, 8, 0x8000000), (24, 10, 0x1000000),
                      (52, 40, 8192), (56, 42, 8192), (60, 44, 4), (64, 46, 16384), (68, 48, 256)):
        A("  s_mov_b32 s%d, s%d" % (d, p))
        A("  s_and_b32 s%d, s%d, 0xffff" % (d + 1, p + 1))
        A("  s_mov_b32 s%d, 0x%x" % (d + 2, n))
        A("  s_mov_b32 s%d, 0x00020000" % (d + 3))
    A("  s_lshr_b32 s28, s2, 6")
    A("  s_cmp_eq_u32 s30, %d" % NW)
    A("  s_cbranch_scc1 L_service")
    A("  v_and_b32 v3, 15, v2")
    A("  v_lshrrev_b32 v4, 4, v2")
    A("  v_lshlrev_b32 v5, 8, v3")
    A("  v_lshl_add_u32 v5, v4, 4, v5")
    A("  v_lshlrev_b32 v6, 4, v3")
    A("  v_lshl_add_u32 v6, v4, 10, v6")
    A("  v_and_b32 v7, 1, v2")
    A("  v_lshlrev_b32 v7, 8, v7")
    A("  v_lshl_add_u32 v7, v4, 4, v7")
    A("  s_lshl_b32 s31, s2, 16")
    A("  s_mul_i32 s33, s30, %d" % (4096 * TPW))
    A("  s_add_u32 s31, s31, s33")
    NP = 4 * TPW
    Q = 24
    KB = 40
    VB = KB + 16 * TPW
    D = VB + 16 * TPW
    P = D + NP
    PO = P + NP
    ACC = PO + NP
    ACO = ACC + 8
    M = ACO + 8
    L, T0, T1 = M + 1, M + 2, M + 3
    U = M + 4
    NVS = U + 4
    BT = D
    assert 3 * NP >= 17
    out = []
    def wait_for(tag):
        idx = [i for i, x in enumerate(out) if x == tag]
        if not idx:
            return
        last = max(idx)
        A("  s_waitcnt vmcnt(%d)" % (len(out) - 1 - last))
        del out[: last + 1]
    def loadQ(i):
        A("  s_add_u32 s34, s28, %d" % (i * (NWG // CPP)))
        A("  s_lshl_b32 s34, s34, 9")
        for s in range(4):
            A("  buffer_load_dwordx4 v[%d:%d], v7, s[12:15], s34 offen offset:%d" % (Q + 4 * s, Q + 4 * s + 3, 64 * s))
        out.extend(["Q%d" % i] * 4)
    def loadK(i):
        for t in range(TPW):
            A("  s_add_u32 s33, s31, %d" % (i * NWG * 65536 + t * 4096))
            for s in range(4):
                b = KB + 16 * t + 4 * s
                A("  buffer_load_dwordx4 v[%d:%d], v5, s[16:19], s33 offen offset:%d %s" % (b, b + 3, 64 * s, ldf))
        out.extend(["K%d" % i] * 4 * TPW)
    def loadV(i):
        for t in range(TPW):
            A("  s_add_u32 s33, s31, %d" % (i * NWG * 65536 + t * 4096))
            for j in range(4):
                b = VB + 16 * t + 4 * j
                A("  buffer_load_dwordx4 v[%d:%d], v6, s[20:23], s33 offen offset:%d %s" % (b, b + 3, 256 * j, ldf))
        out.extend(["V%d" % i] * 4 * TPW)
    loadQ(0); loadK(0); loadV(0)
    A("  v_and_b32 v8, 1, v2")
    A("  v_lshlrev_b32 v8, 9, v8")
    A("  v_lshl_add_u32 v8, v3, 5, v8")
    A("  s_lshl_b32 s33, s30, 10")
    A("  v_add_u32 v8, s33, v8")
    A("  v_xor_b32 v9, 512, v8")
    A("  v_lshlrev_b32 v10, 3, v2")
    A("  s_lshl_b32 s33, s30, 4")
    A("  s_add_u32 s33, s33, %d" % LDS_ML)
    A("  v_add_u32 v10, s33, v10")
    A("  v_mov_b32 v11, %d" % LDS_CNT)
    A("  v_mov_b32 v12, 1")
    A("  s_barrier")
    for i in range(NIT):
        wait_for("K%d" % i)
        for t in range(TPW):
            for s in range(4):
                kb = KB + 16 * t + 4 * s
                A("  v_mfma_f32_16x16x32_bf16 v[%d:%d], v[%d:%d], v[%d:%d], %s" % (
                    D + 4 * t, D + 4 * t + 3, kb, kb + 3, Q + 4 * s, Q + 4 * s + 3,
                    "0" if s == 0 else "v[%d:%d]" % (D + 4 * t, D + 4 * t + 3)))
        if i + 1 < NIT:
            loadQ(i + 1); loadK(i + 1)
        else:
            A("  s_nop 7")
        A("  s_nop 1")
        A("  v_max3_f32 v%d, v%d, v%d, v%d" % (T0, D, D + 1, D + 2))
        A("  v_max_f32 v%d, v%d, v%d" % (T0, T0, D + 3))
        for j in range(4, NP, 2):
            A("  v_max3_f32 v%d, v%d, v%d, v%d" % (T0, T0, D + j, D + j + 1))
        A("  ds_bpermute_b32 v%d, v20, v%d" % (T1, T0))
        A("  s_waitcnt lgkmcnt(0)")
        A("  v_max_f32 v%d, v%d, v%d" % (T0, T0, T1))
        A("  ds_bpermute_b32 v%d, v21, v%d" % (T1, T0))
        A("  s_waitcnt lgkmcnt(0)")
        A("  v_max_f32 v%d, v%d, v%d" % (T0, T0, T1))
        A("  v_mul_f32 v%d, s32, v%d" % (M, T0))
        for j in range(NP):
            A("  v_fma_f32 v%d, v%d, s32, -v%d" % (P + j, D + j, M))
        for j in range(NP):
            A("  v_exp_f32 v%d, v%d" % (P + j, P + j))
        A("  s_nop 1")
        for j in range(NP):
            A("  v_mov_b32_dpp v%d, v%d quad_perm:[1,0,3,2] row_mask:0xf bank_mask:0xf" % (PO + j, P + j))
        A("  v_add_f32 v%d, v%d, v%d" % (L, P, P + 1))
        for j in range(2, NP):
            A("  v_add_f32 v%d, v%d, v%d" % (L, L, P + j))
        wait_for("V%d" % i)
        for t in range(TPW):
            for j in range(4):
                for k in range(4):
                    r = VB + 16 * t + 4 * j + k
                    u = U + 2 * (k % 2)
                    pj = 4 * t + j
                    op = "v_mul_f32" if pj == 0 else "v_fmac_f32"
                    A("  v_lshlrev_b32 v%d, 16, v%d" % (u, r))
                    A("  v_and_b32 v%d, 0xffff0000, v%d" % (u + 1, r))
                    A("  %s v%d, v%d, v%d" % (op, ACC + 2 * k, P + pj, u))
                    A("  %s v%d, v%d, v%d" % (op, ACC + 2 * k + 1, P + pj, u + 1))
                    A("  %s v%d, v%d, v%d" % (op, ACO + 2 * k, PO + pj, u))
                    A("  %s v%d, v%d, v%d" % (op, ACO + 2 * k + 1, PO + pj, u + 1))
        if i + 1 < NIT:
            loadV(i + 1)
        vals = [L] + [ACC + k for k in range(16)]
        for a in (20, 21):
            for n, r in enumerate(vals):
                A("  ds_bpermute_b32 v%d, v%d, v%d" % (BT + n, a, r))
            A("  s_waitcnt lgkmcnt(0)")
            for n, r in enumerate(vals):
                A("  v_add_f32 v%d, v%d, v%d" % (r, r, BT + n))
        po = i * NW * 1024
        A("  s_mov_b64 exec, s[72:73]")
        A("  ds_write_b128 v8, v[%d:%d] offset:%d" % (ACC, ACC + 3, po))
        A("  ds_write_b128 v8, v[%d:%d] offset:%d" % (ACC + 4, ACC + 7, po + 16))
        A("  ds_write_b128 v9, v[%d:%d] offset:%d" % (ACO, ACO + 3, po))
        A("  ds_write_b128 v9, v[%d:%d] offset:%d" % (ACO + 4, ACO + 7, po + 16))
        A("  s_mov_b64 exec, s[74:75]")
        A("  ds_write_b64 v10, v[%d:%d] offset:%d" % (M, M + 1, i * NW * 16))
        A("  s_mov_b64 exec, s[76:77]")
        A("  s_waitcnt lgkmcnt(0)")
        A("  ds_add_u32 v11, v12 offset:%d" % (4 * i))
        A("  s_mov_b64 exec, -1")
    A("  s_endpgm")
    A("L_service:")
    A("  v_lshlrev_b32 v3, 2, v2")
    A("  v_add_u32 v3, %d, v3" % LDS_CNT)
    A("  v_mov_b32 v4, 0")
    A("  v_cmp_gt_u32 vcc, 16, v2")
    A("  s_and_b64 exec, exec, vcc")
    A("  ds_write_b32 v3, v4")
    A("  s_mov_b64 exec, -1")
    A("  s_waitcnt lgkmcnt(0)")
    A("  s_barrier")
    A("  v_lshlrev_b32 v8, 4, v2")
    A("  v_lshrrev_b32 v9, 5, v2")
    A("  v_lshlrev_b32 v9, 3, v9")
    A("  v_add_u32 v9, %d, v9" % LDS_ML)
    A("  v_lshrrev_b32 v10, 2, v2")
    A("  v_and_b32 v11, 31, v2")
    A("  v_cmp_eq_u32 s[78:79], 0, v11")
    A("  s_mov_b32 s80, -1")
    A("  s_mov_b32 s81, 0")
    A("  s_mov_b32 s82, 0")
    A("  s_mov_b32 s83, -1")
    A("  v_mov_b32 v12, %d" % LDS_CNT)
    A("  s_mov_b32 s37, 0")
    X = 24
    OB = 40
    A("L_sloop:")
    A("  s_lshl_b32 s33, s37, 2")
    A("  v_add_u32 v13, s33, v12")
    A("L_poll:")
    A("  ds_read_b32 v14, v13")
    A("  s_waitcnt lgkmcnt(0)")
    A("  v_readfirstlane_b32 s33, v14")
    A("  s_nop 3")
    A("  s_cmp_eq_u32 s33, %d" % NW)
    A("  s_cbranch_scc1 L_ready")
    A("  s_sleep 4")
    A("  s_branch L_poll")
    A("L_ready:")
    A("  s_mul_i32 s33, s37, %d" % (NW * 1024))
    A("  v_add_u32 v%d, s33, v8" % X)
    for w in range(NW):
        A("  ds_read_b128 v[%d:%d], v%d offset:%d" % (OB + 4 * w, OB + 4 * w + 3, X, 1024 * w))
    A("  s_mul_i32 s33, s37, %d" % (NW * 16))
    A("  v_add_u32 v%d, s33, v9" % (X + 1))
    MLR = OB + 4 * NW
    for w in range(NW):
        A("  ds_read_b64 v[%d:%d], v%d offset:%d" % (MLR + 2 * w, MLR + 2 * w + 1, X + 1, 16 * w))
    A("  s_waitcnt lgkmcnt(0)")
    A("  v_mov_b32 v%d, v%d" % (X + 2, MLR))
    for w in range(1, NW):
        A("  v_max_f32 v%d, v%d, v%d" % (X + 2, X + 2, MLR + 2 * w))
    for w in range(NW):
        A("  v_sub_f32 v%d, v%d, v%d" % (MLR + 2 * w, MLR + 2 * w, X + 2))
    for w in range(NW):
        A("  v_exp_f32 v%d, v%d" % (MLR + 2 * w, MLR + 2 * w))
    A("  s_nop 0")
    A("  v_mul_f32 v%d, v%d, v%d" % (X + 3, MLR, MLR + 1))
    for k in range(4):
        A("  v_mul_f32 v%d, v%d, v%d" % (X + 4 + k, MLR, OB + k))
    for w in range(1, NW):
        A("  v_fmac_f32 v%d, v%d, v%d" % (X + 3, MLR + 2 * w, MLR + 2 * w + 1))
        for k in range(4):
            A("  v_fmac_f32 v%d, v%d, v%d" % (X + 4 + k, MLR + 2 * w, OB + 4 * w + k))
    A("  s_mul_i32 s33, s37, %d" % NWG)
    A("  s_add_u32 s33, s33, s2")
    A("  s_lshl_b32 s35, s33, 10")
    A("  buffer_store_dwordx4 v[%d:%d], v8, s[24:27], s35 offen sc1" % (X + 4, X + 7))
    A("  s_lshl_b32 s35, s33, 4")
    A("  s_add_u32 s35, s35, %d" % MLBASE)
    A("  s_mov_b64 exec, s[78:79]")
    A("  buffer_store_dwordx2 v[%d:%d], v10, s[24:27], s35 offen sc1" % (X + 2, X + 3))
    A("  s_mov_b64 exec, -1")
    A("  v_mov_b32 v%d, 1" % (X + 8))
    A("  v_mov_b32 v%d, 0" % (X + 9))
    A("  s_lshr_b32 s36, s33, 6")
    A("  s_lshl_b32 s33, s36, 2")
    A("  s_waitcnt vmcnt(0)")
    A("  s_mov_b64 exec, s[76:77]")
    A("  buffer_atomic_add v%d, v%d, s[68:71], s33 offen sc0 sc1" % (X + 8, X + 9))
    A("  s_mov_b64 exec, -1")
    A("  s_waitcnt vmcnt(0)")
    A("  v_readfirstlane_b32 s33, v%d" % (X + 8))
    A("  s_nop 3")
    A("  s_cmp_lg_u32 s33, %d" % (CPP - 1))
    A("  s_cbranch_scc1 L_snext")
    W = 24
    A("  s_lshl_b32 s34, s36, 10")
    A("  s_add_u32 s34, s34, %d" % MLBASE)
    A("  buffer_load_dwordx4 v[%d:%d], v8, s[24:27], s34 offen sc1" % (W, W + 3))
    A("  s_lshl_b32 s34, s36, 9")
    A("  buffer_load_dword v28, v3, s[12:15], s34 offen offset:%d" % 0)
    o.pop()
    A("  v_lshlrev_b32 v13, 2, v2")
    A("  buffer_load_dword v28, v13, s[12:15], s34 offen")
    A("  buffer_load_dword v29, v13, s[12:15], s34 offen offset:256")
    A("  s_lshl_b32 s34, s36, 8")
    A("  buffer_load_dword v30, v13, s[52:55], s34 offen")
    A("  v_lshlrev_b32 v14, 3, v11")
    A("  buffer_load_dwordx2 v[32:33], v14, s[56:59], s34 offen")
    A("  s_lshr_b32 s34, s36, 4")
    A("  s_lshl_b32 s34, s34, 1")
    A("  v_mov_b32 v14, 0")
    A("  buffer_load_ushort v31, v14, s[60:63], s34 offen")
    A("  s_lshl_b32 s35, s36, 16")
    def ldpart(s_, reg):
        if s_ % 4 == 0:
            A("  s_add_u32 s33, s35, %d" % (1024 * s_))
        A("  buffer_load_dwordx4 v[%d:%d], v8, s[24:27], s33 offen offset:%d sc1" % (reg, reg + 3, 1024 * (s_ % 4)))
    for s_ in range(32):
        ldpart(s_, OB + 4 * s_)
    A("  s_waitcnt vmcnt(32)")
    A("  v_lshlrev_b32 v34, 16, v30")
    A("  v_and_b32 v35, 0xffff0000, v30")
    A("  v_lshlrev_b32 v36, 16, v28")
    A("  v_and_b32 v37, 0xffff0000, v28")
    A("  v_mul_f32 v28, v36, v34")
    A("  v_fmac_f32 v28, v37, v35")
    A("  v_lshlrev_b32 v36, 16, v29")
    A("  v_and_b32 v37, 0xffff0000, v29")
    A("  v_mul_f32 v29, v36, v34")
    A("  v_fmac_f32 v29, v37, v35")
    def red2(a, b, op):
        for n in range(6):
            A("  ds_bpermute_b32 v34, v%d, v%d" % (16 + n, a))
            A("  ds_bpermute_b32 v35, v%d, v%d" % (16 + n, b))
            A("  s_waitcnt lgkmcnt(0)")
            A("  %s v%d, v%d, v34" % (op, a, a))
            A("  %s v%d, v%d, v35" % (op, b, b))
    red2(28, 29, "v_add_f32")
    A("  v_lshlrev_b32 v31, 16, v31")
    A("  v_sub_f32 v31, 1.0, v31")
    A("  v_mul_f32 v31, 0xceabfb8f, v31")
    A("  v_fma_f32 v28, v28, s32, v31")
    A("  v_fma_f32 v29, v29, s32, v31")
    A("  v_max_f32 v30, v%d, v28" % W)
    A("  v_max_f32 v31, v%d, v29" % (W + 2))
    red2(30, 31, "v_max_f32")
    A("  v_sub_f32 v%d, v%d, v30" % (W, W))
    A("  v_sub_f32 v%d, v%d, v31" % (W + 2, W + 2))
    A("  v_sub_f32 v28, v28, v30")
    A("  v_sub_f32 v29, v29, v31")
    A("  v_exp_f32 v%d, v%d" % (W, W))
    A("  v_exp_f32 v%d, v%d" % (W + 2, W + 2))
    A("  v_exp_f32 v28, v28")
    A("  v_exp_f32 v29, v29")
    A("  s_nop 0")
    A("  v_mul_f32 v%d, v%d, v%d" % (W + 1, W, W + 1))
    A("  v_mul_f32 v%d, v%d, v%d" % (W + 3, W + 2, W + 3))
    red2(W + 1, W + 3, "v_add_f32")
    A("  v_add_f32 v%d, v%d, v28" % (W + 1, W + 1))
    A("  v_add_f32 v%d, v%d, v29" % (W + 3, W + 3))
    A("  v_cmp_lt_u32 vcc, 31, v2")
    A("  s_nop 1")
    A("  v_cndmask_b32 v28, v28, v29, vcc")
    A("  v_cndmask_b32 v30, v%d, v%d, vcc" % (W + 1, W + 3))
    A("  v_lshlrev_b32 v36, 16, v32")
    A("  v_and_b32 v37, 0xffff0000, v32")
    A("  v_lshlrev_b32 v38, 16, v33")
    A("  v_and_b32 v39, 0xffff0000, v33")
    for k in range(4):
        A("  v_mul_f32 v%d, v28, v%d" % (36 + k, 36 + k))
    def fmas(lst):
        for half, wreg in ((0, W), (1, W + 2)):
            A("  s_mov_b64 exec, s[%d:%d]" % ((80, 81) if half == 0 else (82, 83)))
            for b0 in range(0, len(lst), 8):
                grp = lst[b0:b0 + 8]
                for n, (pj, reg) in enumerate(grp):
                    A("  v_readlane_b32 s%d, v%d, %d" % (84 + n, wreg, pj))
                A("  s_nop 1")
                for n, (pj, reg) in enumerate(grp):
                    for k in range(4):
                        A("  v_fma_f32 v%d, s%d, v%d, v%d" % (36 + k, 84 + n, reg + k, 36 + k))
        A("  s_mov_b64 exec, -1")
    A("  s_waitcnt vmcnt(0)")
    fmas([(s_, OB + 4 * s_) for s_ in range(32)])
    for s_ in range(32, 64):
        ldpart(s_, OB + 4 * (s_ - 32))
    A("  s_waitcnt vmcnt(0)")
    fmas([(s_, OB + 4 * (s_ - 32)) for s_ in range(32, 64)])
    A("  v_rcp_f32 v30, v30")
    A("  s_nop 0")
    for k in range(4):
        A("  v_mul_f32 v%d, v%d, v30" % (36 + k, 36 + k))
    A("  v_cvt_pk_bf16_f32 v36, v36, v37")
    A("  v_cvt_pk_bf16_f32 v37, v38, v39")
    A("  v_lshlrev_b32 v13, 3, v2")
    A("  s_lshl_b32 s35, s36, 9")
    A("  buffer_store_dwordx2 v[36:37], v13, s[64:67], s35 offen")
    A("L_snext:")
    A("  s_add_u32 s37, s37, 1")
    A("  s_cmp_lt_u32 s37, %d" % NIT)
    A("  s_cbranch_scc1 L_sloop")
    A("L_end:")
    A("  s_endpgm")
    A('.section .rodata,"a"')
    A(".p2align 6")
    A(".amdhsa_kernel %s" % K)
    nv = max(NVS, OB + 128)
    nv = (nv + 7) // 8 * 8
    A("  .amdhsa_next_free_vgpr %d" % nv)
    A("  .amdhsa_next_free_sgpr 96")
    A("  .amdhsa_accum_offset %d" % nv)
    A("  .amdhsa_group_segment_fixed_size 0")
    A("  .amdhsa_kernarg_size 72")
    A("  .amdhsa_user_sgpr_count 2")
    A("  .amdhsa_user_sgpr_kernarg_segment_ptr 1")
    A("  .amdhsa_system_sgpr_workgroup_id_x 1")
    A(".end_amdhsa_kernel")
    return "\n".join(o) + "\n"

if __name__ == "__main__":
    outp = sys.argv[1]
    kw = {}
    for a in sys.argv[2:]:
        k, v = a.split("=")
        kw[k] = int(v) if v.isdigit() else v
    open(outp, "w").write(gen(**kw))
```

```python
import sys, math
NAME = "standalone__tree_speculative_verify_tree_attention_over_candidate_token_tree__decode"

def gen(ldf="", NWG=256, NW=8):
    TPW = 16 // NW
    NCH = 2048
    NIT = NCH // NWG
    CPP = 64
    MLBASE = NCH * 1024
    LDS_ML = NIT * NW * 1024
    LDS_CNT = LDS_ML + NIT * NW * 16
    LDS_BYTES = LDS_CNT + 64
    o = []
    A = o.append
    hdr = open("cdna_kernels/%s.s.ref" % NAME).read().split("\n")
    for l in hdr:
        if l.startswith("; @launch"):
            continue
        if l.startswith(";"):
            A(l)
        else:
            break
    A("; @launch grid=(%d,1,1) block=(%d,1,1) lds=%d" % (NWG, (NW + 1) * 64, LDS_BYTES))
    A('.amdgcn_target "amdgcn-amd-amdhsa--gfx950"')
    A(".text")
    K = NAME + "_kernel"
    A(".globl %s" % K)
    A(".p2align 8")
    A(".type %s,@function" % K)
    A("%s:" % K)
    A("  s_cmp_ge_u32 s2, %d" % NWG)
    A("  s_cbranch_scc1 L_end")
    A("  s_load_dwordx4 s[4:7], s[0:1], 0")
    A("  s_load_dwordx2 s[8:9], s[0:1], 16")
    A("  s_load_dwordx2 s[10:11], s[0:1], 64")
    A("  s_load_dwordx8 s[40:47], s[0:1], 24")
    A("  s_load_dwordx2 s[48:49], s[0:1], 56")
    A("  v_lshrrev_b32 v1, 6, v0")
    A("  v_and_b32 v2, 63, v0")
    A("  s_nop 0")
    A("  v_readfirstlane_b32 s30, v1")
    A("  s_mov_b32 s32, 0x3e0293ee")
    for n, x in enumerate((1, 2, 4, 8, 16, 32)):
        A("  v_xor_b32 v%d, %d, v2" % (16 + n, x))
        A("  v_lshlrev_b32 v%d, 2, v%d" % (16 + n, 16 + n))
    A("  v_cmp_gt_u32 s[72:73], 16, v2")
    A("  v_cmp_gt_u32 s[74:75], 2, v2")
    A("  v_cmp_eq_u32 s[76:77], 0, v2")
    A("  s_waitcnt lgkmcnt(0)")
    for (d, p, n) in ((12, 4, 16384), (16, 6, 0x8000000), (20, 8, 0x8000000), (24, 10, 0x1000000),
                      (52, 40, 8192), (56, 42, 8192), (60, 44, 4), (64, 46, 16384), (68, 48, 256)):
        A("  s_mov_b32 s%d, s%d" % (d, p))
        A("  s_and_b32 s%d, s%d, 0xffff" % (d + 1, p + 1))
        A("  s_mov_b32 s%d, 0x%x" % (d + 2, n))
        A("  s_mov_b32 s%d, 0x00020000" % (d + 3))
    A("  s_lshr_b32 s28, s2, 6")
    A("  s_cmp_eq_u32 s30, %d" % NW)
    A("  s_cbranch_scc1 L_service")
    A("  v_and_b32 v3, 15, v2")
    A("  v_lshrrev_b32 v4, 4, v2")
    A("  v_lshlrev_b32 v5, 8, v3")
    A("  v_lshl_add_u32 v5, v4, 4, v5")
    A("  v_lshlrev_b32 v6, 4, v3")
    A("  v_lshl_add_u32 v6, v4, 10, v6")
    A("  v_and_b32 v7, 1, v2")
    A("  v_lshlrev_b32 v7, 8, v7")
    A("  v_lshl_add_u32 v7, v4, 4, v7")
    A("  s_lshl_b32 s31, s2, 16")
    A("  s_mul_i32 s33, s30, %d" % (4096 * TPW))
    A("  s_add_u32 s31, s31, s33")
    NP = 4 * TPW
    Q = 24
    KB = 40
    VB = KB + 16 * TPW
    D = VB + 16 * TPW
    P = D + NP
    PO = P + NP
    ACC = PO + NP
    ACO = ACC + 8
    M = ACO + 8
    L, T0, T1 = M + 1, M + 2, M + 3
    U = M + 4
    NVS = U + 4
    BT = D
    assert 3 * NP >= 17
    out = []
    def wait_for(tag):
        idx = [i for i, x in enumerate(out) if x == tag]
        if not idx:
            return
        last = max(idx)
        A("  s_waitcnt vmcnt(%d)" % (len(out) - 1 - last))
        del out[: last + 1]
    def loadQ(i):
        A("  s_add_u32 s34, s28, %d" % (i * (NWG // CPP)))
        A("  s_lshl_b32 s34, s34, 9")
        for s in range(4):
            A("  buffer_load_dwordx4 v[%d:%d], v7, s[12:15], s34 offen offset:%d" % (Q + 4 * s, Q + 4 * s + 3, 64 * s))
        out.extend(["Q%d" % i] * 4)
    def loadK(i):
        for t in range(TPW):
            A("  s_add_u32 s33, s31, %d" % (i * NWG * 65536 + t * 4096))
            for s in range(4):
                b = KB + 16 * t + 4 * s
                A("  buffer_load_dwordx4 v[%d:%d], v5, s[16:19], s33 offen offset:%d %s" % (b, b + 3, 64 * s, ldf))
        out.extend(["K%d" % i] * 4 * TPW)
    def loadV(i):
        for t in range(TPW):
            A("  s_add_u32 s33, s31, %d" % (i * NWG * 65536 + t * 4096))
            for j in range(4):
                b = VB + 16 * t + 4 * j
                A("  buffer_load_dwordx4 v[%d:%d], v6, s[20:23], s33 offen offset:%d %s" % (b, b + 3, 256 * j, ldf))
        out.extend(["V%d" % i] * 4 * TPW)
    loadQ(0); loadK(0); loadV(0)
    A("  v_and_b32 v8, 1, v2")
    A("  v_lshlrev_b32 v8, 9, v8")
    A("  v_lshl_add_u32 v8, v3, 5, v8")
    A("  s_lshl_b32 s33, s30, 10")
    A("  v_add_u32 v8, s33, v8")
    A("  v_xor_b32 v9, 512, v8")
    A("  v_lshlrev_b32 v10, 3, v2")
    A("  s_lshl_b32 s33, s30, 4")
    A("  s_add_u32 s33, s33, %d" % LDS_ML)
    A("  v_add_u32 v10, s33, v10")
    A("  v_mov_b32 v11, %d" % LDS_CNT)
    A("  v_mov_b32 v12, 1")
    A("  s_barrier")
    for i in range(NIT):
        wait_for("K%d" % i)
        for t in range(TPW):
            for s in range(4):
                kb = KB + 16 * t + 4 * s
                A("  v_mfma_f32_16x16x32_bf16 v[%d:%d], v[%d:%d], v[%d:%d], %s" % (
                    D + 4 * t, D + 4 * t + 3, kb, kb + 3, Q + 4 * s, Q + 4 * s + 3,
                    "0" if s == 0 else "v[%d:%d]" % (D + 4 * t, D + 4 * t + 3)))
        if i + 1 < NIT:
            loadQ(i + 1); loadK(i + 1)
        else:
            A("  s_nop 7")
        A("  s_nop 1")
        A("  v_max3_f32 v%d, v%d, v%d, v%d" % (T0, D, D + 1, D + 2))
        A("  v_max_f32 v%d, v%d, v%d" % (T0, T0, D + 3))
        for j in range(4, NP, 2):
            A("  v_max3_f32 v%d, v%d, v%d, v%d" % (T0, T0, D + j, D + j + 1))
        A("  ds_bpermute_b32 v%d, v20, v%d" % (T1, T0))
        A("  s_waitcnt lgkmcnt(0)")
        A("  v_max_f32 v%d, v%d, v%d" % (T0, T0, T1))
        A("  ds_bpermute_b32 v%d, v21, v%d" % (T1, T0))
        A("  s_waitcnt lgkmcnt(0)")
        A("  v_max_f32 v%d, v%d, v%d" % (T0, T0, T1))
        A("  v_mul_f32 v%d, s32, v%d" % (M, T0))
        for j in range(NP):
            A("  v_fma_f32 v%d, v%d, s32, -v%d" % (P + j, D + j, M))
        for j in range(NP):
            A("  v_exp_f32 v%d, v%d" % (P + j, P + j))
        A("  s_nop 1")
        for j in range(NP):
            A("  v_mov_b32_dpp v%d, v%d quad_perm:[1,0,3,2] row_mask:0xf bank_mask:0xf" % (PO + j, P + j))
        A("  v_add_f32 v%d, v%d, v%d" % (L, P, P + 1))
        for j in range(2, NP):
            A("  v_add_f32 v%d, v%d, v%d" % (L, L, P + j))
        wait_for("V%d" % i)
        for t in range(TPW):
            for j in range(4):
                for k in range(4):
                    r = VB + 16 * t + 4 * j + k
                    u = U + 2 * (k % 2)
                    pj = 4 * t + j
                    op = "v_mul_f32" if pj == 0 else "v_fmac_f32"
                    A("  v_lshlrev_b32 v%d, 16, v%d" % (u, r))
                    A("  v_and_b32 v%d, 0xffff0000, v%d" % (u + 1, r))
                    A("  %s v%d, v%d, v%d" % (op, ACC + 2 * k, P + pj, u))
                    A("  %s v%d, v%d, v%d" % (op, ACC + 2 * k + 1, P + pj, u + 1))
                    A("  %s v%d, v%d, v%d" % (op, ACO + 2 * k, PO + pj, u))
                    A("  %s v%d, v%d, v%d" % (op, ACO + 2 * k + 1, PO + pj, u + 1))
        if i + 1 < NIT:
            loadV(i + 1)
        vals = [L] + [ACC + k for k in range(16)]
        for a in (20, 21):
            for n, r in enumerate(vals):
                A("  ds_bpermute_b32 v%d, v%d, v%d" % (BT + n, a, r))
            A("  s_waitcnt lgkmcnt(0)")
            for n, r in enumerate(vals):
                A("  v_add_f32 v%d, v%d, v%d" % (r, r, BT + n))
        po = i * NW * 1024
        A("  s_mov_b64 exec, s[72:73]")
        A("  ds_write_b128 v8, v[%d:%d] offset:%d" % (ACC, ACC + 3, po))
        A("  ds_write_b128 v8, v[%d:%d] offset:%d" % (ACC + 4, ACC + 7, po + 16))
        A("  ds_write_b128 v9, v[%d:%d] offset:%d" % (ACO, ACO + 3, po))
        A("  ds_write_b128 v9, v[%d:%d] offset:%d" % (ACO + 4, ACO + 7, po + 16))
        A("  s_mov_b64 exec, s[74:75]")
        A("  ds_write_b64 v10, v[%d:%d] offset:%d" % (M, M + 1, i * NW * 16))
        A("  s_mov_b64 exec, s[76:77]")
        A("  s_waitcnt lgkmcnt(0)")
        A("  ds_add_u32 v11, v12 offset:%d" % (4 * i))
        A("  s_mov_b64 exec, -1")
    A("  s_endpgm")
    A("L_service:")
    A("  v_lshlrev_b32 v3, 2, v2")
    A("  v_add_u32 v3, %d, v3" % LDS_CNT)
    A("  v_mov_b32 v4, 0")
    A("  v_cmp_gt_u32 vcc, 16, v2")
    A("  s_and_b64 exec, exec, vcc")
    A("  ds_write_b32 v3, v4")
    A("  s_mov_b64 exec, -1")
    A("  s_waitcnt lgkmcnt(0)")
    A("  s_barrier")
    A("  v_lshlrev_b32 v8, 4, v2")
    A("  v_lshrrev_b32 v9, 5, v2")
    A("  v_lshlrev_b32 v9, 3, v9")
    A("  v_add_u32 v9, %d, v9" % LDS_ML)
    A("  v_lshrrev_b32 v10, 2, v2")
    A("  v_and_b32 v11, 31, v2")
    A("  v_cmp_eq_u32 s[78:79], 0, v11")
    A("  s_mov_b32 s80, -1")
    A("  s_mov_b32 s81, 0")
    A("  s_mov_b32 s82, 0")
    A("  s_mov_b32 s83, -1")
    A("  v_mov_b32 v12, %d" % LDS_CNT)
    A("  s_mov_b32 s37, 0")
    X = 24
    OB = 40
    A("L_sloop:")
    A("  s_lshl_b32 s33, s37, 2")
    A("  v_add_u32 v13, s33, v12")
    A("L_poll:")
    A("  ds_read_b32 v14, v13")
    A("  s_waitcnt lgkmcnt(0)")
    A("  v_readfirstlane_b32 s33, v14")
    A("  s_nop 3")
    A("  s_cmp_eq_u32 s33, %d" % NW)
    A("  s_cbranch_scc1 L_ready")
    A("  s_sleep 4")
    A("  s_branch L_poll")
    A("L_ready:")
    A("  s_mul_i32 s33, s37, %d" % (NW * 1024))
    A("  v_add_u32 v%d, s33, v8" % X)
    for w in range(NW):
        A("  ds_read_b128 v[%d:%d], v%d offset:%d" % (OB + 4 * w, OB + 4 * w + 3, X, 1024 * w))
    A("  s_mul_i32 s33, s37, %d" % (NW * 16))
    A("  v_add_u32 v%d, s33, v9" % (X + 1))
    MLR = OB + 4 * NW
    for w in range(NW):
        A("  ds_read_b64 v[%d:%d], v%d offset:%d" % (MLR + 2 * w, MLR + 2 * w + 1, X + 1, 16 * w))
    A("  s_waitcnt lgkmcnt(0)")
    A("  v_mov_b32 v%d, v%d" % (X + 2, MLR))
    for w in range(1, NW):
        A("  v_max_f32 v%d, v%d, v%d" % (X + 2, X + 2, MLR + 2 * w))
    for w in range(NW):
        A("  v_sub_f32 v%d, v%d, v%d" % (MLR + 2 * w, MLR + 2 * w, X + 2))
    for w in range(NW):
        A("  v_exp_f32 v%d, v%d" % (MLR + 2 * w, MLR + 2 * w))
    A("  s_nop 0")
    A("  v_mul_f32 v%d, v%d, v%d" % (X + 3, MLR, MLR + 1))
    for k in range(4):
        A("  v_mul_f32 v%d, v%d, v%d" % (X + 4 + k, MLR, OB + k))
    for w in range(1, NW):
        A("  v_fmac_f32 v%d, v%d, v%d" % (X + 3, MLR + 2 * w, MLR + 2 * w + 1))
        for k in range(4):
            A("  v_fmac_f32 v%d, v%d, v%d" % (X + 4 + k, MLR + 2 * w, OB + 4 * w + k))
    A("  s_mul_i32 s33, s37, %d" % NWG)
    A("  s_add_u32 s33, s33, s2")
    A("  s_lshl_b32 s35, s33, 10")
    A("  buffer_store_dwordx4 v[%d:%d], v8, s[24:27], s35 offen sc1" % (X + 4, X + 7))
    A("  s_lshl_b32 s35, s33, 4")
    A("  s_add_u32 s35, s35, %d" % MLBASE)
    A("  s_mov_b64 exec, s[78:79]")
    A("  buffer_store_dwordx2 v[%d:%d], v10, s[24:27], s35 offen sc1" % (X + 2, X + 3))
    A("  s_mov_b64 exec, -1")
    A("  v_mov_b32 v%d, 1" % (X + 8))
    A("  v_mov_b32 v%d, 0" % (X + 9))
    A("  s_lshr_b32 s36, s33, 6")
    A("  s_lshl_b32 s33, s36, 2")
    A("  s_waitcnt vmcnt(0)")
    A("  s_mov_b64 exec, s[76:77]")
    A("  buffer_atomic_add v%d, v%d, s[68:71], s33 offen sc1" % (X + 8, X + 9))
    A("  s_mov_b64 exec, -1")
    A("  s_add_u32 s37, s37, 1")
    A("  s_cmp_lt_u32 s37, %d" % NIT)
    A("  s_cbranch_scc1 L_sloop")
    A("  s_and_b32 s33, s2, 3")
    A("  s_cmp_lg_u32 s33, 0")
    A("  s_cbranch_scc1 L_end")
    A("  s_lshr_b32 s36, s2, 3")
    A("  s_lshr_b32 s37, s2, 2")
    A("  s_and_b32 s37, s37, 1")
    A("  v_lshlrev_b32 v13, 2, v2")
    A("  s_lshl_b32 s34, s36, 9")
    A("  s_lshl_b32 s33, s37, 8")
    A("  s_add_u32 s34, s34, s33")
    A("  buffer_load_dword v28, v13, s[12:15], s34 offen")
    A("  s_lshl_b32 s33, s36, 8")
    A("  buffer_load_dword v29, v13, s[52:55], s33 offen")
    A("  buffer_load_dword v30, v13, s[56:59], s33 offen")
    A("  s_lshr_b32 s33, s36, 4")
    A("  s_lshl_b32 s33, s33, 1")
    A("  v_mov_b32 v14, 0")
    A("  buffer_load_ushort v31, v14, s[60:63], s33 offen")
    A("  s_waitcnt vmcnt(0)")
    A("  v_lshlrev_b32 v34, 16, v29")
    A("  v_and_b32 v35, 0xffff0000, v29")
    A("  v_lshlrev_b32 v36, 16, v28")
    A("  v_and_b32 v37, 0xffff0000, v28")
    A("  v_mul_f32 v28, v36, v34")
    A("  v_fmac_f32 v28, v37, v35")
    def red1(a_, op):
        for n in range(6):
            A("  ds_bpermute_b32 v34, v%d, v%d" % (16 + n, a_))
            A("  s_waitcnt lgkmcnt(0)")
            A("  %s v%d, v%d, v34" % (op, a_, a_))
    red1(28, "v_add_f32")
    A("  v_lshlrev_b32 v31, 16, v31")
    A("  v_sub_f32 v31, 1.0, v31")
    A("  v_mul_f32 v31, 0xceabfb8f, v31")
    A("  v_fma_f32 v28, v28, s32, v31")
    A("  s_lshl_b32 s33, s36, 2")
    A("L_gpoll:")
    A("  buffer_load_dword v32, v14, s[68:71], s33 offen sc1")
    A("  s_waitcnt vmcnt(0)")
    A("  v_readfirstlane_b32 s35, v32")
    A("  s_nop 3")
    A("  s_cmp_eq_u32 s35, %d" % CPP)
    A("  s_cbranch_scc1 L_gready")
    A("  s_sleep 2")
    A("  s_branch L_gpoll")
    A("L_gready:")
    A("  s_lshl_b32 s34, s36, 10")
    A("  s_lshl_b32 s33, s37, 3")
    A("  s_add_u32 s34, s34, s33")
    A("  s_add_u32 s34, s34, %d" % MLBASE)
    A("  buffer_load_dwordx2 v[24:25], v8, s[24:27], s34 offen sc1")
    A("  v_lshlrev_b32 v15, 3, v2")
    A("  s_lshl_b32 s35, s36, 16")
    A("  s_lshl_b32 s33, s37, 9")
    A("  s_add_u32 s35, s35, s33")
    for s_ in range(64):
        if s_ % 4 == 0:
            A("  s_add_u32 s33, s35, %d" % (1024 * s_))
        A("  buffer_load_dwordx2 v[%d:%d], v15, s[24:27], s33 offen offset:%d sc1" % (OB + 2 * s_, OB + 2 * s_ + 1, 1024 * (s_ % 4)))
        if s_ == 55:
            A("  s_waitcnt vmcnt(40)")
    A("  s_waitcnt vmcnt(63)")
    A("  s_waitcnt vmcnt(63)")
    A("  s_nop 0")
    o.pop(); o.pop(); o.pop()
    A("  s_waitcnt vmcnt(0)")
    A("  v_max_f32 v26, v24, v28")
    red1(26, "v_max_f32")
    A("  v_sub_f32 v24, v24, v26")
    A("  v_sub_f32 v28, v28, v26")
    A("  v_exp_f32 v24, v24")
    A("  v_exp_f32 v28, v28")
    A("  s_nop 0")
    A("  v_mul_f32 v25, v24, v25")
    red1(25, "v_add_f32")
    A("  v_add_f32 v25, v25, v28")
    A("  v_lshlrev_b32 v36, 16, v30")
    A("  v_and_b32 v37, 0xffff0000, v30")
    A("  v_mul_f32 v36, v28, v36")
    A("  v_mul_f32 v37, v28, v37")
    for b0 in range(0, 64, 8):
        for n in range(8):
            A("  v_readlane_b32 s%d, v24, %d" % (84 + n, b0 + n))
        A("  s_nop 1")
        for n in range(8):
            A("  v_fma_f32 v36, s%d, v%d, v36" % (84 + n, OB + 2 * (b0 + n)))
            A("  v_fma_f32 v37, s%d, v%d, v37" % (84 + n, OB + 2 * (b0 + n) + 1))
    A("  v_rcp_f32 v25, v25")
    A("  s_nop 0")
    A("  v_mul_f32 v36, v36, v25")
    A("  v_mul_f32 v37, v37, v25")
    A("  v_cvt_pk_bf16_f32 v36, v36, v37")
    A("  s_lshl_b32 s34, s36, 9")
    A("  s_lshl_b32 s33, s37, 8")
    A("  s_add_u32 s34, s34, s33")
    A("  buffer_store_dword v36, v13, s[64:67], s34 offen")
    A("L_end:")
    A("  s_endpgm")
    A('.section .rodata,"a"')
    A(".p2align 6")
    A(".amdhsa_kernel %s" % K)
    nv = max(NVS, OB + 128)
    nv = (nv + 7) // 8 * 8
    A("  .amdhsa_next_free_vgpr %d" % nv)
    A("  .amdhsa_next_free_sgpr 96")
    A("  .amdhsa_accum_offset %d" % nv)
    A("  .amdhsa_group_segment_fixed_size 0")
    A("  .amdhsa_kernarg_size 72")
    A("  .amdhsa_user_sgpr_count 2")
    A("  .amdhsa_user_sgpr_kernarg_segment_ptr 1")
    A("  .amdhsa_system_sgpr_workgroup_id_x 1")
    A(".end_amdhsa_kernel")
    return "\n".join(o) + "\n"

if __name__ == "__main__":
    outp = sys.argv[1]
    kw = {}
    for a in sys.argv[2:]:
        k, v = a.split("=")
        kw[k] = int(v) if v.isdigit() else v
    open(outp, "w").write(gen(**kw))
```
